```python
import torch

def _softmax(x, axis=-1):
    return torch.softmax(x, dim=axis)
def _gelu(x):
    return torch.nn.functional.gelu(x, approximate="tanh")
def _silu(x):
    return torch.nn.functional.silu(x)
def _sigmoid(x):
    return torch.sigmoid(x)
def _layernorm(x, axis=-1, eps=1e-5):
    m = x.mean(dim=axis, keepdim=True)
    v = x.var(dim=axis, keepdim=True, unbiased=False)
    return (x - m) / torch.sqrt(v + eps)
def _scatter_add(tgt, idx, src, axis=0):
    return tgt.clone().index_add_(axis, idx, src)
def _segment_sum(src, seg, n):
    out = torch.zeros((n,) + src.shape[1:], dtype=src.dtype)
    return out.index_add_(0, seg, src)
def _pad(x, pw):
    flat = tuple(v for pair in reversed(pw) for v in pair)
    return torch.nn.functional.pad(x, flat)

kernel_name = 'sequential_preLN__compressed_kv_cla__geglu_ffn__prompt'

def setup_inputs():

    _w = (lambda a: (lambda t: t.to(torch.bfloat16) if t.is_floating_point() else t)(torch.as_tensor(a)))
    def _A_setup():
        B, H, Sq, Sk, D, M = 1, 32, 2048, 2048, 128, 512
        Dc = 4 * D
        return {
            "x": _w((lambda *s: torch.randn(*s, dtype=torch.bfloat16) * 0.05)(B, Sq, M)),
            "c_kv": _w((lambda *s: torch.randn(*s, dtype=torch.bfloat16) * 0.4)(B, Sk, Dc)),
            "w_q": _w((lambda *s: torch.randn(*s, dtype=torch.bfloat16) * 1.6)(M, H, D) * (M ** -0.5)),
            "w_uk": _w((lambda *s: torch.randn(*s, dtype=torch.bfloat16) * 1.6)(Dc, H, D) * (Dc ** -0.5)),
            "w_uv": _w((lambda *s: torch.randn(*s, dtype=torch.bfloat16) * 0.4)(Dc, H, D) * (Dc ** -0.5)),
            "w_o": _w((lambda *s: torch.randn(*s, dtype=torch.bfloat16) * 0.4)(H, D, M) * ((H * D) ** -0.5)),
        }
    _A_in = _A_setup()

    def _B_setup():
        B, S, D, F = 1, 2048, 512, 1792
        return {
            "x": _w((lambda *s: torch.randn(*s, dtype=torch.bfloat16) * 0.05)(B, S, D)),
            "w_gate": _w((lambda *s: torch.randn(*s, dtype=torch.bfloat16) * 0.05)(D, F)),
            "w_up": _w((lambda *s: torch.randn(*s, dtype=torch.bfloat16) * 0.05)(D, F)),
            "w_down": _w((lambda *s: torch.randn(*s, dtype=torch.bfloat16) * 0.05)(F, D)),
        }
    _B_in = _B_setup()

    return {
        "A_x": _A_in["x"],
        "A_c_kv": _A_in["c_kv"],
        "A_w_q": _A_in["w_q"],
        "A_w_uk": _A_in["w_uk"],
        "A_w_uv": _A_in["w_uv"],
        "A_w_o": _A_in["w_o"],
        "B_x": _B_in["x"],
        "B_w_gate": _B_in["w_gate"],
        "B_w_up": _B_in["w_up"],
        "B_w_down": _B_in["w_down"],
    }

def reference(A_x, A_c_kv, A_w_q, A_w_uk, A_w_uv, A_w_o, B_x, B_w_gate, B_w_up, B_w_down):
    def _A_ref(x, c_kv, w_q, w_uk, w_uv, w_o):
        B, Sq, M = x.shape[0], x.shape[1], x.shape[2]
        Sk = c_kv.shape[1]
        H, D = w_q.shape[1], w_q.shape[2]
        q = torch.einsum("bqm,mhd->bhqd", x, w_q)
        k = torch.einsum("bkc,chd->bhkd", c_kv, w_uk)
        v = torch.einsum("bkc,chd->bhkd", c_kv, w_uv)
        scores = torch.einsum("bhqd,bhkd->bhqk", q, k) * (D ** -0.5)
        off = Sk - Sq
        qi = torch.arange(Sq)[:, None]
        kj = torch.arange(Sk)[None, :]
        cmask = kj <= (qi + off)
        scores = torch.where(cmask[None, None], scores, -1e9)
        p = _softmax(scores, axis=-1)
        ctx = torch.einsum("bhqk,bhkd->bhqd", p, v)
        return torch.einsum("bhqd,hdm->bqm", ctx, w_o)

    def _B_ref(x, w_gate, w_up, w_down):
        return (_gelu(x @ w_gate) * (x @ w_up)) @ w_down

    x = A_x
    h = x + _A_ref(_layernorm(x, axis=-1), A_c_kv, A_w_q, A_w_uk, A_w_uv, A_w_o)
    h2 = h + _B_ref(_layernorm(h, axis=-1), B_w_gate, B_w_up, B_w_down)
    return h2
```

```python
import re

REG_RE = re.compile(r'^(-|abs\()?([vas])(\d+)\)?$')
RNG_RE = re.compile(r'^(-)?([vas])\[(\d+):(\d+)\]$')

def parse_reg(tok):
    tok = tok.strip()
    m = REG_RE.match(tok)
    if m: return [(m.group(2), int(m.group(3)))]
    m = RNG_RE.match(tok)
    if m: return [(m.group(2), i) for i in range(int(m.group(3)), int(m.group(4)) + 1)]
    if tok == 'vcc': return [('s', 'vcc')]
    if tok == 'exec': return [('s', 'exec')]
    if tok == 'm0': return [('s', 'm0')]
    return []

TRANS = ('v_exp_f32', 'v_log_f32', 'v_rcp_f32', 'v_rsq_f32', 'v_sqrt_f32')

class I:
    __slots__ = ('text', 'op', 'kind', 'defs', 'uses', 'tag', 'n', 'info')
    def __init__(self, text, tag=None):
        self.text = text; self.tag = tag; self.n = None; self.info = None
        t = text.split(';')[0].strip()
        if t.endswith(':'):
            self.op = 'label'; self.kind = 'label'; self.defs = []; self.uses = []; return
        if t.startswith('.'):
            self.op = 'dir'; self.kind = 'label'; self.defs = []; self.uses = []; return
        parts = t.split(None, 1)
        op = parts[0]; self.op = op
        rest = parts[1] if len(parts) > 1 else ''
        ops = [o.strip() for o in rest.split(',')] if rest else []
        mods = ''
        if ops:
            sp = ops[-1].split()
            ops[-1] = sp[0]; mods = ' '.join(sp[1:])
        R = [parse_reg(o) for o in ops]
        flat = lambda L: [r for x in L for r in x]
        defs, uses = [], []
        if op.startswith('v_mfma'):
            k = 'mfma'; defs = R[0]; uses = flat(R[1:])
        elif op.startswith('ds_read'):
            k = 'dsr'; defs = R[0]; uses = flat(R[1:])
        elif op.startswith('ds_write'):
            k = 'dsw'; uses = flat(R)
        elif op.startswith('ds_bpermute') or op.startswith('ds_swizzle'):
            k = 'dsr'; defs = R[0]; uses = flat(R[1:])
        elif op.startswith('buffer_load') or op.startswith('global_load'):
            if ' lds' in ' ' + mods or op.startswith('global_load_lds'):
                k = 'dma'; uses = flat(R) + [('s', 'm0')]
            else:
                k = 'vld'; defs = R[0]; uses = flat(R[1:])
        elif op.startswith('buffer_store') or op.startswith('global_store'):
            k = 'vst'; uses = flat(R)
        elif op.startswith('global_atomic') or op.startswith('buffer_atomic'):
            k = 'vst'; uses = flat(R)
            if 'sc0' in mods: k = 'vld'; defs = R[0]; uses = flat(R[1:]) if op.startswith('global') else flat(R)
        elif op in ('buffer_inv', 'buffer_wbl2'):
            k = 'vst'
        elif op.startswith('s_load') or op in ('s_memtime', 's_memrealtime'):
            k = 'smem'; defs = R[0]; uses = flat(R[1:])
        elif op == 's_waitcnt': k = 'wait'
        elif op == 's_barrier': k = 'barrier'
        elif op in ('s_nop', 's_sleep', 's_setprio'): k = 'nop'
        elif op == 's_endpgm': k = 'end'
        elif op.startswith('s_cbranch') or op == 's_branch':
            k = 'branch'
            if 'scc' in op: uses = [('s', 'scc')]
            if 'vcc' in op: uses = [('s', 'vcc')]
            if 'exec' in op: uses = [('s', 'exec')]
        elif op.startswith('s_cmp') or op.startswith('s_bitcmp'):
            k = 'salu'; uses = flat(R); defs = [('s', 'scc')]
        elif op.startswith('s_'):
            k = 'salu'; defs = list(R[0]); uses = flat(R[1:])
            if op.startswith('s_cselect') or op.startswith('s_addc') or op.startswith('s_subb'): uses = uses + [('s', 'scc')]
            if 'saveexec' in op: defs = defs + [('s', 'exec')]; uses = uses + [('s', 'exec')]
            if op in ('s_addk_i32', 's_mulk_i32'): uses = uses + defs
            if not (op.startswith('s_mov') or op.startswith('s_cselect') or op.startswith('s_mul') or op.startswith('s_getreg') or op.startswith('s_getpc')):
                defs = defs + [('s', 'scc')]
        elif op.startswith('v_'):
            base = op.replace('_e32', '').replace('_e64', '').replace('_dpp', '').replace('_sdwa', '')
            k = 'trans' if base in TRANS else 'valu'
            defs = list(R[0]); uses = flat(R[1:])
            if base.startswith('v_add_co') or base.startswith('v_addc_co') or base.startswith('v_sub_co'):
                defs = R[0] + R[1]; uses = flat(R[2:])
            if base in ('v_fmac_f32', 'v_dot2c_f32_bf16') or base.startswith('v_permlane'):
                uses = uses + R[0]
            if base.startswith('v_permlane'): defs = R[0] + R[1]
            if op.endswith('_dpp'): uses = uses + R[0]
            if base == 'v_cndmask_b32' and len(ops) == 3: uses = uses + [('s', 'vcc')]
        else:
            raise ValueError('unknown op ' + text)
        self.kind = k; self.defs = defs; self.uses = uses
    def __repr__(self): return self.text

class W:
    kind = 'W'
    def __init__(self, regs=(), tags=(), lgkm0=False, vm0=False):
        self.regs = set()
        for r in regs:
            self.regs.update(parse_reg(r) if isinstance(r, str) else [r])
        self.tags = set(tags); self.vm = None; self.lg = None
        self.lgkm0 = lgkm0; self.vm0 = vm0; self.need = False; self.needv = False; self.needl = False
        self.defs = []; self.uses = []; self.op = 'W'
    @property
    def text(self):
        p = []
        if self.vm is not None and self.needv: p.append(f'vmcnt({self.vm})')
        if self.lg is not None and self.needl: p.append(f'lgkmcnt({self.lg})')
        return 's_waitcnt ' + ' '.join(p) if p else None

def is_vm(i): return i.kind in ('vld', 'vst', 'dma')
def is_lg(i): return i.kind in ('dsr', 'dsw', 'smem')

class Block:
    def __init__(self, name=''):
        self.name = name; self.l = []
    def __call__(self, text, tag=None):
        for t in text.split('\n'):
            t = t.strip()
            if t: self.l.append(I(t, tag))
        return self
    def w(self, *regs, tags=(), lgkm0=False, vm0=False):
        self.l.append(W(regs, tags, lgkm0, vm0)); return self
    def add(self, x):
        if isinstance(x, (list, tuple)):
            for y in x: self.add(y)
        elif isinstance(x, str): self(x)
        elif isinstance(x, Block): self.l.extend(x.l)
        else: self.l.append(x)
        return self

def auto_waits(block):
    out = []; pend = set()
    for x in block.l:
        if x.kind != 'W':
            t = (set(x.uses) | set(x.defs)) & pend
            if t:
                out.append(W(list(t))); pend -= t
            if x.kind in ('vld', 'dsr', 'smem'): pend |= set(x.defs)
        else:
            pend -= x.regs
        out.append(x)
    block.l = out
    return block

def resolve(paths):
    seqs = []
    for p in paths:
        s = []
        for b in p:
            if isinstance(b, tuple):
                blk, lab = b
                idx = [k for k, x in enumerate(blk.l) if x.kind == 'label' and x.text.strip().startswith(lab + ':')]
                assert len(idx) == 1, lab
                s.extend(blk.l[idx[0]:])
            else: s.extend(b.l)
        seqs.append(s)
    for s in seqs:
        vm, lg = [], []
        lastdef = {}
        lasttag = {}
        for x in s:
            if x.kind == 'W':
                nv = nl = None
                for r in x.regs:
                    if r in lastdef:
                        c, i = lastdef[r]
                        if c == 'vm': nv = min(nv, len(vm) - 1 - i) if nv is not None else len(vm) - 1 - i
                        else:
                            n = len(lg) - 1 - i
                            if lg[i].kind == 'smem' or any(y.kind == 'smem' for y in lg[i:]): n = 0
                            nl = min(nl, n) if nl is not None else n
                for t in x.tags:
                    if t in lasttag:
                        c, i = lasttag[t]
                        if c == 'vm': nv = min(nv, len(vm) - 1 - i) if nv is not None else len(vm) - 1 - i
                        else: nl = min(nl, len(lg) - 1 - i) if nl is not None else len(lg) - 1 - i
                if x.lgkm0: nl = 0
                if x.vm0: nv = 0
                if nv is not None:
                    nv = min(nv, 63); x.vm = nv if x.vm is None else min(x.vm, nv)
                if nl is not None:
                    nl = min(nl, 15); x.lg = nl if x.lg is None else min(x.lg, nl)
                continue
            if x.kind == 'wait':
                if 'lgkmcnt(0)' in x.text:
                    lastdef = {r: v for r, v in lastdef.items() if v[0] != 'lg'}; lasttag = {r: v for r, v in lasttag.items() if v[0] != 'lg'}
                if 'vmcnt(0)' in x.text:
                    lastdef = {r: v for r, v in lastdef.items() if v[0] != 'vm'}; lasttag = {r: v for r, v in lasttag.items() if v[0] != 'vm'}
            for r in x.defs: lastdef.pop(r, None)
            if is_vm(x):
                vm.append(x)
                for r in x.defs: lastdef[r] = ('vm', len(vm) - 1)
                if x.tag: lasttag[x.tag] = ('vm', len(vm) - 1)
            elif is_lg(x):
                lg.append(x)
                for r in x.defs: lastdef[r] = ('lg', len(lg) - 1)
                if x.tag: lasttag[x.tag] = ('lg', len(lg) - 1)
    errs = []
    for s in seqs:
        vm, lg = [], []
        m0own = None
        for pos, x in enumerate(s):
            if x.kind == 'W' or x.kind == 'wait':
                if x.kind == 'W': nv, nl = x.vm, x.lg
                else:
                    m = re.search(r'vmcnt\((\d+)\)', x.text); nv = int(m.group(1)) if m else None
                    m = re.search(r'lgkmcnt\((\d+)\)', x.text); nl = int(m.group(1)) if m else None
                if nv is not None and len(vm) > nv:
                    vm = vm[len(vm) - nv:] if nv else []
                    if x.kind == 'W': x.need = True; x.needv = True
                if nl is not None and len(lg) > nl:
                    if any(y.kind == 'smem' for y in lg) and nl: errs.append(f'counted lgkm wait with smem outstanding: {x.text}')
                    lg = lg[len(lg) - nl:] if nl else []
                    if x.kind == 'W': x.need = True; x.needl = True
                continue
            if x.kind == 'salu' and ('s', 'm0') in x.defs: m0own = 'fresh'
            if x.kind == 'dma':
                if m0own == 'fresh': m0own = x.tag
                elif m0own != x.tag: errs.append(f'M0 owned by {m0own} at [{x.text}] tag {x.tag}')
            touched = set(x.uses) | set(x.defs)
            for y in vm + lg:
                if y.defs and touched & set(y.defs) and not (x is y):
                    if (is_vm(x) and is_vm(y) or x.kind == 'dsr' and y.kind == 'dsr') and not (set(x.uses) & set(y.defs)): continue
                    errs.append(f'uncovered: [{x.text}] touches result of [{y.text}]')
            if is_vm(x):
                vm.append(x)
                if len(vm) > 63: errs.append(f'vmcnt overflow at {x.text}')
            elif is_lg(x):
                lg.append(x)
    return seqs, errs

def scc_check(seqs):
    errs = set()
    for s in seqs:
        last = None
        for x in s:
            if x.kind in ('label', 'W'): continue
            if ('s', 'scc') in x.uses:
                ok = last is not None and (last.op.startswith('s_cmp') or last.op.startswith('s_bitcmp') or x.op.startswith('s_addc'))
                if not ok: errs.add(f'SCC for [{x.text}] comes from [{last.text if last else None}]')
            if ('s', 'scc') in x.defs: last = x
    return sorted(errs)

def mfma_passes(op): return 8 if '32x32' in op else 4

def hazards(seqs):
    errs = set()
    for s in seqs:
        L = [x for x in s if x.kind != 'label' and not (x.kind == 'W' and (not x.need or x.text is None))]
        ns = [(int(x.text.split()[1]) + 1) if (x.kind == 'nop' and x.op == 's_nop') else 1 for x in L]
        for iy, y in enumerate(L):
            yv = y.kind in ('valu', 'trans')
            if not (yv or y.kind in ('mfma', 'vst', 'dsw') or (y.kind == 'salu' and ('s', 'm0') in y.defs)): continue
            YD = set(y.defs); YU = set(y.uses)
            t = 4 * ns[iy]; pipe = 4 * mfma_passes(y.op) if y.kind == 'mfma' else 0
            if y.kind == 'mfma':
                p = mfma_passes(y.op); big = 12 if p == 8 else 8
                yc = set(parse_reg(y.text.split(';')[0].split(',')[3].split()[0]))
            vd = {r for r in YD if r[0] in 'va'}; sd = {r for r in YD if r[0] == 's'}
            for ix in range(iy + 1, min(iy + 40, len(L))):
                x = L[ix]
                if x.kind == 'mfma':
                    t = max(t, pipe); pipe = t + 4 * mfma_passes(x.op)
                d = t // 4 - 1
                if d > 20: break
                U = set(x.uses); D = set(x.defs)
                def chk(cond, need, why):
                    if cond and d < need: errs.add(f'{why}: need {need} have {d}: [{y.text}] -> [{x.text}]')
                vec = x.kind in ('valu', 'trans')
                if y.kind == 'mfma':
                    if x.kind == 'mfma':
                        c = set(parse_reg(x.text.split(';')[0].split(',')[3].split()[0]))
                        ab = set(parse_reg(x.text.split(',')[1])) | set(parse_reg(x.text.split(',')[2]))
                        chk(ab & YD, big, 'mfma D->A/B')
                        if c & YD and c != YD: chk(True, big - 2, 'mfma D->C partial')
                        if D & YD and c != YD: chk(True, big - 2, 'mfma WAW D')
                        if D & yc and yc != YD: chk(True, 7 if p == 8 else 3, 'mfma C WAR by mfma')
                    elif x.kind != 'W':
                        chk((U | D) & YD, big, 'mfma D->read/write')
                        if vec or x.kind in ('dsr', 'vld'): chk(D & yc, 7 if p == 8 else 3, 'mfma C WAR')
                if yv:
                    if x.kind == 'mfma': chk(U & vd, 2, 'valu->mfma')
                    if y.kind == 'trans' and x.kind in ('valu', 'mfma', 'vst', 'dsw'): chk(U & vd, 1, 'trans->use')
                    if x.op.startswith('v_permlane'): chk(U & vd, 2, 'valu->permlane')
                    if x.op.endswith('_dpp'): chk(U & vd, 2, 'valu->dpp')
                    if x.op.startswith('v_readfirstlane') or x.op.startswith('v_readlane'): chk(U & vd, 1, 'valu->readlane')
                    if vec: chk(U & sd, 2, 'valu sgpr->valu')
                    if is_vm(x): chk(U & sd, 5, 'valu sgpr->vmem')
                    if x.kind in ('salu', 'branch'): chk(U & sd, 1, 'valu sgpr->salu (pad)')
                    if ('s', 'exec') in YD and x.kind == 'mfma': chk(True, 4, 'valu exec->mfma')
                if y.kind == 'salu' and x.kind == 'dma': chk(True, 1, 'm0->dma')
                if y.kind in ('vst', 'dsw') and vec and ('x4' in y.op or 'x3' in y.op or 'b128' in y.op): chk(D & YU, 2, 'store data WAR')
                t += 4 * ns[ix]
    return sorted(errs)

def render(blocks):
    out = []
    for b in blocks:
        for x in b.l:
            if x.kind == 'W':
                if x.need and x.text: out.append('    ' + x.text)
            elif x.kind == 'label': out.append(x.text)
            else: out.append('    ' + x.text)
    return '\n'.join(out)

COST = {'valu': 1, 'trans': 2, 'dsr': 1, 'dsw': 2, 'vld': 2, 'vst': 2, 'dma': 2, 'salu': 1, 'W': 1, 'wait': 1, 'nop': 1, 'barrier': 3, 'branch': 1, 'smem': 1, 'label': 0}
def order_gap(fill):
    cls = lambda x: 0 if x.kind in ('salu', 'W', 'wait', 'nop', 'barrier', 'branch', 'label', 'smem') else (1 if x.kind in ('dsr', 'dsw', 'vld', 'vst', 'dma') else 2)
    groups = [(g if isinstance(g, list) else [g]) for g in fill]
    key = lambda g: max(cls(y) for y in g) if isinstance(g, list) else cls(g)
    groups.sort(key=key)
    return [y for g in groups for y in g]

def weave(blk, mfmas, fills):
    for g, m in enumerate(mfmas):
        blk.add(m)
        blk.add(order_gap(fills.get(g, [])))
    return blk

def gap_report(mfmas, fills, cap=6):
    over = 0
    for g in range(len(mfmas)):
        f = order_gap(fills.get(g, []))
        c = 0
        for k, y in enumerate(f):
            if y.kind == 'W' and not (y.need): continue
            c += COST.get(y.kind, 1)
        if f and f[0].kind in ('salu', 'W', 'wait', 'nop', 'branch'): c -= 1
        if c > cap: over += c - cap
    return over

def gap_load(fill):
    f = order_gap(fill); c = 0
    for y in f: c += COST.get(y.kind, 1)
    if f and f[0].kind in ('salu', 'W', 'wait', 'nop', 'branch'): c -= 1
    return c

def pack(fl, ops, g, gend, cap=6):
    ops = list(ops)
    while ops and g < gend:
        x = ops[0]; L = x if isinstance(x, list) else [x]
        c = sum(COST.get(y.kind, 1) for y in L)
        mem = any(y.kind in ('vst', 'vld', 'dsr', 'dsw', 'dma') for y in L)
        if mem:
            g += 1
            if g >= gend: break
            fl[g].append(ops.pop(0)); continue
        if gap_load(fl[g]) + c <= cap: fl[g].append(ops.pop(0))
        else: g += 1
    return g, ops

def edf(fl, items, g, sp=2, verbose=False):
    todo = list(items)
    while todo:
        seen = set(); cand = []
        for it in todo:
            c = it.get('c')
            if c is not None and c in seen: continue
            if c is not None: seen.add(c)
            cand.append(it)
        av = [it for it in cand if it['e'] <= g]
        if not av:
            g = min(it['e'] for it in cand); continue
        def dl(it):
            c = it.get('c')
            return min([x['d'] for x in todo if c is not None and x.get('c') == c] + [it['d']])
        it = min(av, key=dl); todo.remove(it)
        for x in it['ops']:
            fl[g].append(x); last = g; g += it.get('sp', sp)
        assert last <= it['d'], ('deadline missed', it.get('c'), last, it['d'])
    return g
```

```python
from asm import *

MB = 1 << 20
WS_KV   = 0
WS_XN   = 32 * MB
WS_CTX  = 34 * MB
WS_WOT  = 50 * MB
WS_H    = 54 * MB
WS_ST   = 56 * MB
WS_WGUT = 57 * MB
WS_ACT  = 61 * MB
WS_WDT  = 68 * MB
WS_TS   = 128 * MB

ARG = dict(x=0, c=8, wq=16, wuk=24, wuv=32, wo=40, bx=48, wg=56, wu=64, wd=72, out=80, dbg=88, ws=96)
SIZE = dict(x=2*MB, c=2*MB, wq=4*MB, wuk=4*MB, wuv=4*MB, wo=4*MB, wg=512*3584, wu=512*3584, wd=1792*1024, out=2*MB)

def srd_from_ptr(b, d, p, size):
    b(f's_mov_b32 s{d}, s{p}\ns_and_b32 s{d+1}, s{p+1}, 0xffff\ns_mov_b32 s{d+2}, {size:#x}\ns_mov_b32 s{d+3}, 0x20000')

def srd_ws(b, d, p, off, size):
    b(f's_add_u32 s{d}, s{p}, {off:#x}\ns_addc_u32 s{d+1}, s{p+1}, 0\ns_and_b32 s{d+1}, s{d+1}, 0xffff\ns_mov_b32 s{d+2}, {size:#x}\ns_mov_b32 s{d+3}, 0x20000')

def rng(p, a, n): return f'{p}[{a}:{a+n-1}]'
def mfma(d, a, b, c=None):
    return I(f'v_mfma_f32_32x32x16_bf16 {d}, {a}, {b}, {c if c is not None else d}')

KD = """
.section .rodata,"a"
.p2align 6
.amdhsa_kernel {name}
  .amdhsa_next_free_vgpr {nv}
  .amdhsa_next_free_sgpr 102
  .amdhsa_accum_offset {acc}
  .amdhsa_group_segment_fixed_size 0
  .amdhsa_kernarg_size 104
  .amdhsa_user_sgpr_count 2
  .amdhsa_user_sgpr_kernarg_segment_ptr 1
  .amdhsa_system_sgpr_workgroup_id_x 1
  .amdhsa_float_denorm_mode_32 3
.end_amdhsa_kernel
.text
"""
def wrap(name, body, nv=512, acc=256):
    return f".globl {name}\n.p2align 8\n.type {name},@function\n{name}:\n{body}\n" + KD.format(name=name, nv=nv, acc=acc)

class Stamps:
    def __init__(self, on, kidx):
        self.on = on; self.k = kidx; self.n = 0
    def mark(self, b):
        if not self.on: return
        k = self.n; self.n += 1
        assert k < 16
        if k == 0: b('v_mov_b32 v254, 0')
        b(f's_memrealtime s[76:77]\ns_memtime s[78:79]\ns_waitcnt lgkmcnt(0)\nv_writelane_b32 v254, s76, {2*k}\nv_writelane_b32 v254, s78, {2*k+1}')
    def item(self):
        bb = Block(); self.mark(bb); return bb.l
    def flush(self, b, wsptr, name):
        if not self.on: return
        self.mark(b)
        b(f'v_mbcnt_lo_u32_b32 v1, -1, 0\nv_mbcnt_hi_u32_b32 v1, -1, v1')
        b(f's_lshl_b32 s70, s2, 2\ns_add_u32 s70, s70, s71\ns_lshl_b32 s70, s70, 7\ns_add_u32 s70, s70, {WS_TS + self.k*131072:#x}')
        b(f'v_lshl_add_u32 v4, v1, 2, s70\nv_cmp_gt_u32 vcc, 32, v1\ns_nop 0\ns_and_saveexec_b64 s[72:73], vcc')
        b(f'global_store_dword v4, v254, s[{wsptr}:{wsptr+1}]\ns_mov_b64 exec, s[72:73]')

def check(name, paths, blocks, verbose=True):
    name = name[-14:]
    seqs, errs = resolve(paths)
    hz = hazards(seqs) + scc_check(seqs)
    for e in errs[:20]: print(f'[{name}] WAIT-ERR', e)
    for e in hz[:20]: print(f'[{name}] HAZARD', e)
    assert not errs and not hz, name
    return render(blocks)
```

```python
from common import *
import struct, math
fb = lambda x: '0x%08x' % struct.unpack('<I', struct.pack('<f', x))[0]
LDS = 163840
WS_FL = 72 * MB
FXN, FKV, FP, FC, FH, FA = 4096, 8192, 12288, 16384, 20480, 24576
WSZ = 96 * MB
OOB = 0x7f000000
SPIN = 50000

WS, KVR = 8, 12
sW, sH, sI, sNon = 71, 75, 74, 73
vL16, vF0 = 224, 255

def vstream(fl, items, g, sp=2):
    for (e, x) in items:
        g = max(g, e); fl[g].append(x); g += sp
    return g

def flag_store(soff_reg, vNon):
    return I(f'buffer_store_dword v{vNon}, v{vF0}, s[{WS}:{WS+3}], s{soff_reg} offen sc1')

class Poll:
    n = 0
    def __init__(self, name, vaddr, soff, vdst, nd=1):
        Poll.n += 1; self.lab = f'poll{Poll.n}_{name}'; self.a = vaddr; self.so = soff; self.d = vdst; self.nd = nd
    def ld(self):
        r = f'v{self.d}' if self.nd == 1 else rng('v', self.d, self.nd)
        return f'buffer_load_dword{"" if self.nd == 1 else "x%d" % self.nd} {r}, v{self.a}, s[{WS}:{WS+3}], s{self.so} offen sc1'
    def load(self): return I(self.ld())
    def cmp(self):
        o = [I(f'v_cmp_ne_u32 vcc, s{sNon}, v{self.d}')]
        for k in range(1, self.nd): o += [I(f'v_cmp_ne_u32 s[56:57], s{sNon}, v{self.d+k}'), I('s_nop 0'), I('s_or_b64 vcc, vcc, s[56:57]')]
        return o
    def check(self):
        return [W([rng('v', self.d, self.nd)])] + self.cmp() + [I('s_nop 1'), I(f's_cbranch_vccnz L_{self.lab}'), I(f'L_{self.lab}_ok:')]
    def slow(self, b):
        b(f'L_{self.lab}:\ns_mov_b32 s58, 0\nL_{self.lab}_sp:\ns_sleep 1\n{self.ld()}\ns_waitcnt vmcnt(0)')
        b.add(self.cmp())
        b(f's_add_u32 s58, s58, 1\ns_cmp_lt_u32 s58, {SPIN}\ns_cbranch_scc0 L_{self.lab}_ok\ns_cbranch_vccnz L_{self.lab}_sp\ns_branch L_{self.lab}_ok')

def gen(name, opt):
    Poll.n = 0
    ts = Stamps(opt.get('ts'), 0)
    slow = Block('slow')
    RING = 96 * 1024
    C, WK, WV, WQ, T1, T2 = 16, 20, 24, 28, 32, 36
    pX, pWO, pWG, pWU, pWD = 40, 42, 44, 46, 52
    sC, sWo, sWv, sM, sT, sST, sCB, sWB, sXA, sXB = 60, 61, 62, 63, 64, 65, 66, 67, 68, 69
    sKV, sM0 = 54, 55
    sU = [3, 4, 5, 6, 7, 70, 72]
    vwk, vtk, vwv, vtv, vc, vcr, vpa, vpb, vta, vtb = [225, 226, 227, 228], [229, 230, 231, 232], [233, 234, 235, 236], [237, 238], [239, 240, 241, 242], [243, 244, 245, 246], [247, 248, 249, 250], [251, 252], 253, 220
    vNon = 221
    vx, vxn, vfl, vfa = 212, 213, 214, 216
    WF, NWF = 192, 5
    accK = lambda ct, kt: (0 if ct < 2 else 64) + ((ct & 1) * 2 + kt) * 16
    accV = lambda p, ct, kt: (128 if p == 0 else 0) + (ct * 2 + kt) * 16
    accQ = lambda ct, t: 64 + 64 * t + 16 * ct
    pro = Block('pro'); b = pro
    b(f's_cmp_ge_u32 s2, 256\ns_cbranch_scc1 L_end_{name}')
    ts.mark(b)
    b(f's_load_dwordx4 s[40:43], s[0:1], 0\ns_load_dwordx4 s[60:63], s[0:1], 16\ns_load_dwordx4 s[64:67], s[0:1], 32')
    b(f's_load_dwordx4 s[44:47], s[0:1], 56\ns_load_dwordx2 s[52:53], s[0:1], 72\ns_load_dwordx4 s[4:7], s[0:1], 88')
    b('v_lshrrev_b32 v70, 6, v0\nv_and_b32 v71, 63, v0\nv_mov_b32 v69, v0\nv_readfirstlane_b32 s71, v70')
    L = 71
    b(f'v_lshlrev_b32 v{vL16}, 4, v{L}\nv_lshrrev_b32 v72, 3, v{L}\nv_lshrrev_b32 v73, 4, v{L}\nv_and_b32 v74, 7, v{L}')
    b(f'v_and_b32 v80, 15, v{L}\nv_lshrrev_b32 v81, 2, v80\nv_xor_b32 v81, v81, v73\nv_and_b32 v82, 3, v{L}\nv_lshl_add_u32 v81, v81, 2, v82')
    b(f'v_lshlrev_b32 v81, 4, v81\nv_lshl_add_u32 v81, v73, 13, v81')
    for j in range(4): b(f'v_add_u32 v{vwk[j]}, {j*(4*8192-1024)}, v81')
    for i in range(2):
        b(f'v_add_u32 v75, {4*i}, v73\nv_and_b32 v75, 7, v75\nv_xor_b32 v75, v75, v74\nv_lshlrev_b32 v75, 4, v75\nv_lshl_add_u32 v75, v72, 10, v75')
        b(f'v_add_u32 v{vc[i]}, {i*(8192-1024)}, v75\nv_add_u32 v{vc[i+2]}, {(i+2)*(8192-1024)}, v75')
    b(f's_and_b32 s68, s2, 7\ns_lshr_b32 s69, s2, 3\ns_and_b32 s70, s69, 3\ns_lshl_b32 s68, s68, 2\ns_add_u32 s{sH}, s68, s70\ns_lshr_b32 s{sI}, s69, 2')
    b('s_waitcnt lgkmcnt(0)')
    srd_from_ptr(b, WK, 62, SIZE['wuk']); srd_from_ptr(b, C, 42, SIZE['c'])
    srd_from_ptr(b, WQ, 60, SIZE['wq']); srd_from_ptr(b, WV, 64, SIZE['wuv'])
    b(f's_mov_b32 s{pWO}, s66\ns_mov_b32 s{pWO+1}, s67')
    b(f's_lshl_b32 s70, s{sI}, 2\ns_add_u32 s70, s70, s{sW}')
    b(f's_lshl_b32 s{sC}, s70, 16\ns_mul_i32 s{sCB}, s{sW}, {24*1024}')
    b(f's_lshl_b32 s{sWB}, s{sW}, 12\ns_add_u32 s{sWB}, s{sWB}, {RING}')
    b(f's_lshl_b32 s3, s{sH}, 8\ns_lshl_b32 s{sWo}, s{sW}, 17\ns_add_u32 s{sWo}, s{sWo}, s3\ns_lshl_b32 s{sWv}, s{sW}, 18\ns_add_u32 s{sWv}, s{sWv}, s3')
    def c_dma(m):
        out = []
        for g in range(2):
            pre = [I(f's_add_u32 m0, s{sCB}, {(m%3)*8192 + g*4096}'), I(f's_add_u32 s{sT}, s{sC}, {128*m + g*32768}')]
            for i in range(4):
                x = I(f'buffer_load_dwordx4 v{vc[i]}, s[{C}:{C+3}], s{sT} offen offset:{i*1024} lds', f'c{m}_{g}')
                out.append(pre + [x] if i == 0 else x)
        return out
    def w_dma(n):
        if n < 8: so = f's_add_u32 s{sM}, s{sWo}, {64*n*8192}'; srd = WK; vv = vwk
        elif n < 16:
            p, kk = divmod(n - 8, 4); so = f's_add_u32 s{sM}, s{sWv}, {128*kk*8192 + p*128}'; srd = WV; vv = vwv
        else: so = f's_add_u32 s{sM}, s{sWo}, {64*(n-16)*8192}'; srd = WQ; vv = vwk
        out = []
        for j in range(4):
            x = I(f'buffer_load_dwordx4 v{vv[j]}, s[{srd}:{srd+3}], s{sM} offen offset:{j*1024} lds', f'w{n}')
            out.append([I(f's_add_u32 m0, s{sWB}, {(n%4)*16384}'), I(so), x] if j == 0 else x)
        return out
    b.add(w_dma(0)); b.add(c_dma(0)); b.add(w_dma(1))
    npre = opt.get('pre_c1', 1)
    if npre: b.add(c_dma(1))
    srd_from_ptr(b, WS, 6, WSZ); srd_from_ptr(b, T1, pX, SIZE['x']); srd_from_ptr(b, T2, 4, 256)
    if ts.on: b('s_mov_b32 s98, s6\ns_mov_b32 s99, s7')
    b(f's_lshl_b32 s3, s{sH}, 20\ns_add_u32 s{KVR}, s6, s3\ns_addc_u32 s{KVR+1}, s7, 0\ns_and_b32 s{KVR+1}, s{KVR+1}, 0xffff')
    b(f's_lshl_b32 s4, s{sI}, 16\ns_sub_u32 s{KVR+2}, {MB:#x}, s4\ns_mov_b32 s{KVR+3}, 0x20000')
    b(f's_lshl_b32 s70, s70, 15\ns_add_u32 s{sST}, s3, s70')
    b(f'v_cmp_eq_u32 vcc, 0, v69\nv_mov_b32 v75, {OOB:#x}\ns_nop 0\nv_cndmask_b32 v{vF0}, v75, 0, vcc')
    b(f's_cmp_lg_u32 s2, 0\ns_cbranch_scc1 L_notag_{name}\ns_cmp_lg_u32 s{sW}, 0\ns_cbranch_scc1 L_notag_{name}')
    tagb = Block()
    tagb(f's_mov_b32 s3, {WS_FL:#x}\nv_mov_b32 v76, 0\nbuffer_load_dword v78, v76, s[{WS}:{WS+3}], s3 offen sc1\ns_waitcnt vmcnt(0)')
    tagb(f's_mov_b32 s4, 0x9e3779b1\nv_mul_lo_u32 v78, v78, s4\nv_add_u32 v78, 0x7f4a7c15, v78\nv_mov_b32 v79, 1')
    tagb(f'buffer_store_dword v78, v{vF0}, s[{WS}:{WS+3}], s3 offen sc1\nbuffer_store_dwordx2 v[78:79], v{vF0}, s[{T2}:{T2+3}], 0 offen sc1')
    pro2 = Block('pro2'); b = pro2
    b(f'L_notag_{name}:')
    if opt.get('warm', 1):
        for t in 'AB': b(f's_call_b64 s[48:49], L_fix{t}0_{name}\ns_call_b64 s[50:51], L_fix{t}1_{name}')
    b(f'v_and_b32 v75, 1, v73\nv_lshlrev_b32 v75, 2, v75\nv_xor_b32 v75, v75, v74\nv_lshlrev_b32 v75, 4, v75\nv_lshl_add_u32 v75, v72, 13, v75')
    for j in range(4): b(f'v_add_u32 v{vwv[j]}, {j*(8*8192-1024)}, v75')
    b(f'v_and_b32 v76, 31, v{L}\nv_lshrrev_b32 v77, 5, v{L}\nv_lshrrev_b32 v78, 1, v{L}\nv_and_b32 v78, 7, v78\nv_xor_b32 v78, v78, v77')
    b(f'v_lshlrev_b32 v76, 7, v76\nv_add_u32 v76, s{sCB}, v76')
    for s in range(4): b(f'v_xor_b32 v79, {2*s}, v78\nv_lshl_add_u32 v{vcr[s]}, v79, 4, v76')
    b(f'v_lshrrev_b32 v81, 2, v80\nv_and_b32 v83, 1, v73\nv_lshlrev_b32 v83, 5, v83\nv_lshl_add_u32 v83, v82, 3, v83\nv_lshl_add_u32 v84, v77, 3, v81')
    for ct in range(4):
        b(f'v_xor_b32 v79, {ct}, v81\nv_lshl_add_u32 v79, v79, 6, v83\nv_lshl_add_u32 v79, v84, 8, v79\nv_add_u32 v{vtk[ct]}, {RING}, v79')
    for ct in range(2):
        b(f'v_lshrrev_b32 v79, 1, v81\nv_xor_b32 v79, {ct}, v79\nv_lshl_add_u32 v79, v79, 6, v83\nv_lshl_add_u32 v79, v84, 7, v79\nv_add_u32 v{vtv[ct]}, {RING}, v79')
    b(f'v_lshlrev_b32 v79, 4, v80\nv_lshl_add_u32 v79, v73, 10, v79')
    for j in range(4): b(f'v_add_u32 v{vpa[j]}, {j*(4096-1024)}, v79')
    b(f'v_mul_u32_u24 v79, 3584, v72\nv_lshl_add_u32 v79, v74, 4, v79')
    for j in range(2): b(f'v_add_u32 v{vpb[j]}, {j*(8*3584-1024)}, v79')
    b(f'v_lshl_add_u32 v79, v77, 2, v81\nv_lshl_add_u32 v79, v79, 8, v83\nv_add_u32 v{vta}, s{sCB}, v79')
    b(f'v_and_b32 v79, 1, v73\nv_lshlrev_b32 v79, 11, v79\nv_lshl_add_u32 v79, v84, 7, v79\nv_lshl_add_u32 v79, v82, 3, v79\nv_add_u32 v{vtb}, s{sCB}, v79')
    b(f's_lshl_b32 s3, s2, 2\ns_add_u32 s3, s3, s{sW}\ns_lshl_b32 s3, s3, 1')
    b(f'v_and_b32 v79, 1, v{L}\nv_add_u32 v79, s3, v79\nv_lshrrev_b32 v85, 1, v{L}\nv_lshlrev_b32 v{vx}, 4, v85\nv_lshl_add_u32 v{vx}, v79, 10, v{vx}')
    b(f'v_and_b32 v79, 31, v79\nv_and_b32 v75, 1, v85\nv_lshl_add_u32 v79, v75, 5, v79\nv_lshlrev_b32 v79, 4, v79\nv_lshrrev_b32 v85, 1, v85\nv_lshl_add_u32 v{vxn}, v85, 10, v79')
    b(f's_lshl_b32 s3, s{sI}, 7\ns_sub_u32 s4, {15*128}, s3\nv_mov_b32 v75, s3\nv_mov_b32 v76, s4\nv_cmp_gt_u32 vcc, 32, v{L}\nv_lshlrev_b32 v79, 2, v80\ns_nop 0\nv_cndmask_b32 v75, v76, v75, vcc\nv_add_u32 v{vfa}, v75, v79')
    b(f'v_lshlrev_b32 v{vfa+1}, 2, v74\nv_mov_b32 v{vfa+2}, 0\nv_and_b32 v{vfa+3}, 31, v{L}\nv_lshlrev_b32 v78, 2, v77\nv_sub_u32 v{vfa+3}, v{vfa+3}, v78')
    b(f's_lshl_b32 s3, s{sI}, 2\ns_add_u32 s4, s3, s{sW}\ns_sub_u32 s3, 60, s3\ns_add_u32 s3, s3, s{sW}')
    b(f's_lshl_b32 s{sXA}, s4, 15\ns_add_u32 s{sXA}, s{sXA}, {WS_XN:#x}\ns_lshl_b32 s{sXB}, s3, 15\ns_add_u32 s{sXB}, s{sXB}, {WS_XN:#x}')
    b(f's_lshl_b32 s{sKV}, s{sW}, 13\ns_mov_b32 s{sM0}, s{sKV}')
    cfrag = lambda kt, s: rng('a', (kt * 32 + s) * 4, 4)
    xfrag = lambda t, ks: rng('a', 128 + 4 * ((2 * ks + t) % 32), 4)
    def c_reads(m): return [I(f'ds_read_b128 {cfrag(kt, 4*m+s)}, v{vcr[s]} offset:{(m%3)*8192 + kt*4096}') for s in range(4) for kt in range(2)]
    wf = lambda F: WF + 4 * (F % NWF)
    def tr_reads(F):
        n, f = divmod(F, 16); r = wf(F)
        if n < 8 or n >= 16: s, ct = divmod(f, 4); a = vtk[ct]; o = (n % 4) * 16384 + s * 4096; d = 1024
        else: s, ct = divmod(f, 2); a = vtv[ct]; o = (n % 4) * 16384 + s * 2048; d = 512
        return [I(f'ds_read_b64_tr_b16 v[{r}:{r+1}], v{a} offset:{o}'), I(f'ds_read_b64_tr_b16 v[{r+2}:{r+3}], v{a} offset:{o+d}')]
    LA = 4
    b.w(tags=['c0_1']); b.add(c_reads(0)); b('s_barrier')
    for F in range(LA): b.add(tr_reads(F))
    ts.mark(b)

    NM = 768
    M = []; fl = {g: [] for g in range(-1, NM + 40)}
    for F in range(384):
        n, f = divmod(F, 16); w_ = rng('v', wf(F), 4); need = [w_]
        for kt in range(2):
            if n < 8:
                s, ct = divmod(f, 4); ks = 4 * n + s; a = accK(ct, kt); A, B = w_, cfrag(kt, ks); need.append(B)
            elif n < 16:
                p, kk = divmod(n - 8, 4); s, ct = divmod(f, 2); ks = 8 * kk + s; a = accV(p, ct, kt); A, B = cfrag(kt, ks), w_
            else:
                s, ct = divmod(f, 4); ks = 4 * (n - 16) + s; a = accQ(ct, kt); A, B = w_, xfrag(kt, ks); need.append(B)
            d = rng('v', a, 16)
            M.append(mfma(d, A, B, 0 if ks == 0 else d))
        fl[2*F-1].insert(0, W(need))
        if F + LA < 384:
            r = tr_reads(F + LA); fl[2*F].append(r[0]); fl[2*F+1].append(r[1])
    BG = 20
    bar = {}
    for n in range(23):
        bar[n] = [W(tags=[f'w{n+1}']), I('s_barrier')]; fl[32*n + BG].append(bar[n])
    for n in range(7):
        fl[32*n + 23].append(W(tags=[f'c{n+1}_1']))
        for k, x in enumerate(c_reads(n + 1)): fl[32*n + 24 + k].append(x)
    for n in range(5): fl[32*n + 7].append(W([cfrag(kt, 4*n+s) for s in range(4) for kt in range(2)]))
    def x_loads(n):
        out = []
        for s in range(4):
            for t, so in ((0, sXA), (1, sXB)):
                i_ = I(f'buffer_load_dwordx4 {xfrag(t, 4*n+s)}, v{vL16}, s[{WS}:{WS+3}], s{so} offen offset:{s*1024} sc1')
                out.append([i_, I(f's_add_u32 s{so}, s{so}, 4096')] if s == 3 else i_)
        return out
    def kv_dma(tag):
        out = []
        for g in range(2):
            pre = [I(f's_add_u32 m0, s{sM0}, {g*4096}'), I(f's_add_u32 s{sM}, s{sKV}, {g*4096}')]
            for j in range(4):
                x = I(f'buffer_load_dwordx4 v{vL16}, s[{KVR}:{KVR+3}], s{sM} offen offset:{j*1024} sc1 lds', tag + str(g))
                out.append(pre + [x] if j == 0 else x)
        out.append([I(f's_add_u32 s{sKV}, s{sKV}, 32768'), I(f's_add_u32 s{sM0}, s{sM0}, 32768'), I(f's_and_b32 s{sM0}, s{sM0}, 0x1ffff')])
        return out
    def store(reg, q, imm, tag=None):
        return [I(f's_add_u32 s{sU[0]}, s{sST}, {q*4096}'), I(f'buffer_store_dwordx4 {rng("v", reg, 4)}, v{vL16}, s[{WS}:{WS+3}], s{sU[0]} offen offset:{imm*1024} sc1', tag)]
    cvt4 = lambda base: [I(f'v_cvt_pk_bf16_f32 v{base+k}, v{base+2*k}, v{base+2*k+1}') for k in range(4)]
    items = []
    def epi(tiles, g, step, dl, tag):
        for (reg, q, imm) in tiles:
            for k, x in enumerate(cvt4(reg)): fl[g + k].append(x)
            items.append(dict(e=g + 4, d=dl, ops=[store(reg, q, imm, tag)], c=tag)); g += step
    kt_ = lambda cts: [(accK(ct, kt) + 8*u, kt*2 + ((2*ct+u) >> 2), (2*ct+u) & 3) for ct in cts for kt in range(2) for u in range(2)]
    vt = lambda p: [(accV(p, ct, kt) + 8*u, 4 + kt*2 + u, 2*p + ct) for ct in range(2) for kt in range(2) for u in range(2)]
    epi(kt_((0, 1)), 256 + 3, 14, 383, 'k01')
    epi(kt_((2, 3)), 256 + 40, 18, 500, 'k23')
    epi(vt(0), 384 + 8, 13, 511, 'v1')
    epi(vt(1), 512 + 3, 5, 32*18 + 10, 'v2')
    XL, U, T0, T1v = 128, 136, 152, 153
    ln = [W([f'v[{XL}:{XL+7}]'])]
    for k in range(8): ln += [I(f'v_lshlrev_b32 v{U+2*k}, 16, v{XL+k}'), I(f'v_and_b32 v{U+2*k+1}, 0xffff0000, v{XL+k}')]
    def reduce(first):
        r = list(first)
        for d in ('quad_perm:[2,3,0,1]', 'row_ror:4', 'row_ror:8'):
            r += ['gap', I(f'v_add_f32_dpp v{T0}, v{T0}, v{T0} {d} row_mask:0xf bank_mask:0xf')]
        for p in ('16', '32'):
            r += [I(f'v_mov_b32 v{T1v}, v{T0}'), 'gap', I(f'v_permlane{p}_swap_b32 v{T1v}, v{T0}'), 'gap', I(f'v_add_f32 v{T0}, v{T0}, v{T1v}')]
        return r
    ln += reduce([I(f'v_add_f32 v{T0}, v{U}, v{U+1}')] + [I(f'v_add_f32 v{T0}, v{T0}, v{U+k}') for k in range(2, 16)])
    ln.append(I(f'v_mul_f32 v{T0+2}, 0xbb000000, v{T0}'))
    for k in range(16): ln.append(I(f'v_add_f32 v{U+k}, v{U+k}, v{T0+2}'))
    ln += reduce([I(f'v_mul_f32 v{T0}, v{U}, v{U}')] + [I(f'v_fmac_f32 v{T0}, v{U+k}, v{U+k}') for k in range(1, 16)])
    ln += [I(f'v_mov_b32 v{T1v}, {fb(1e-5)}'), I(f'v_fmac_f32 v{T1v}, 0x3b000000, v{T0}'), I(f'v_rsq_f32 v{T1v}, v{T1v}'), 'gap',
           I(f'v_mul_f32 v{T1v}, {fb(math.log2(math.e) / math.sqrt(128.0))}, v{T1v}')]
    for k in range(16): ln.append(I(f'v_mul_f32 v{U+k}, v{U+k}, v{T1v}'))
    for k in range(8): ln.append(I(f'v_cvt_pk_bf16_f32 v{XL+k}, v{U+2*k}, v{U+2*k+1}'))
    g = 64; cnt = 0
    for x in ln:
        if x == 'gap': g += 1; cnt = 0; continue
        fl[g].append(x); cnt += 1
        if cnt == 2: g += 1; cnt = 0
    gln = g + 1
    xst = [[I(f's_lshr_b32 s{sU[1]}, s2, 2'), I(f's_lshl_b32 s{sU[1]}, s{sU[1]}, 15'), I(f's_add_u32 s{sU[1]}, s{sU[1]}, {WS_XN:#x}'),
            I(f'buffer_store_dwordx4 v[{XL}:{XL+3}], v{vxn}, s[{WS}:{WS+3}], s{sU[1]} offen sc1', 'xn')],
           [I(f's_add_u32 s{sU[1]}, s{sU[1]}, 16384'), I(f'buffer_store_dwordx4 v[{XL+4}:{XL+7}], v{vxn}, s[{WS}:{WS+3}], s{sU[1]} offen sc1', 'xn')]]
    tagld = f'buffer_load_dwordx2 v[{vfl}:{vfl+1}], v{vfa+2}, s[{T2}:{T2+3}], 0 offen sc1'
    fl[32*5 + 30].append([W([f'v[{vfl}:{vfl+1}]']), I(f'v_cmp_ne_u32 vcc, 1, v{vfl+1}'), I('s_nop 1'), I(f's_cbranch_vccnz L_tagsp_{name}'), I(f'L_tagok_{name}:'),
                          I(f'v_readfirstlane_b32 s{sNon}, v{vfl}'), I(f'v_mov_b32 v{vNon}, v{vfl}')])
    slow(f'L_tagsp_{name}:\ns_mov_b32 s58, 0\nL_tagsp2_{name}:\ns_sleep 1\n{tagld}\ns_waitcnt vmcnt(0)\nv_cmp_ne_u32 vcc, 1, v{vfl+1}\ns_add_u32 s58, s58, 1\ns_cmp_lt_u32 s58, {SPIN}')
    slow(f's_cbranch_scc0 L_tagok_{name}\ns_cbranch_vccnz L_tagsp2_{name}\ns_branch L_tagok_{name}')
    st = []
    if not npre: st += [(0, x) for x in c_dma(1)]
    st += [(0, x) for x in w_dma(2)] + [(0, x) for x in c_dma(2)]
    st += [(0, I(f'buffer_load_dwordx4 v[{XL}:{XL+3}], v{vx}, s[{T1}:{T1+3}], 0 offen')), (0, I(f'buffer_load_dwordx4 v[{XL+4}:{XL+7}], v{vx}, s[{T1}:{T1+3}], 0 offen offset:512'))]
    st += [(0, x) for x in w_dma(3)]
    for n in range(5):
        st += [(32*n + 8, x) for x in c_dma(n + 3)] + [(32*(n+1) + BG + 1, x) for x in w_dma(n + 4)]
        if n == 3: st += [(gln, x) for x in xst] + [(0, I(tagld))]
    g = vstream(fl, st, 0)
    assert g <= 32*6, g
    bar[7][0].tags.add('xn')
    items.append(dict(e=32*7 + BG + 1, d=32*7 + BG + 2, ops=[[I(f's_lshr_b32 s{sU[1]}, s2, 4'), I(f's_lshl_b32 s{sU[1]}, s{sU[1]}, 7'), I(f's_and_b32 s{sU[2]}, s2, 15'), I(f's_lshl_b32 s{sU[2]}, s{sU[2]}, 2'),
                              I(f's_add_u32 s{sU[1]}, s{sU[1]}, s{sU[2]}'), I(f's_add_u32 s{sU[1]}, s{sU[1]}, {WS_FL + FXN:#x}'), flag_store(sU[1], vNon)]]))
    for n in range(6, 21): items.append(dict(e=32*n + BG + 1, d=32*(n+1) + 14, ops=w_dma(n + 3), c='w'))
    pxn = Poll(name, vfa, sU[3], vfl)
    items.append(dict(e=32*11 + 2, d=32*12, ops=[[I(f's_mov_b32 s{sU[3]}, {WS_FL + FXN:#x}'), pxn.load()]]))
    fl[32*12 + 28].append(pxn.check()); pxn.slow(slow)
    for n in range(8): items += [dict(e=32*(13 + n) + 1, d=32*(14 + n) + 24, ops=[x], c='x') for x in x_loads(n)]
    a0, a1, a2, a3, a4, a5 = sU[1], sU[2], sU[4], sU[5], sU[6], 59
    def mksrd(d, p, size): bb = Block(); srd_from_ptr(bb, d, p, size); return bb.l
    pj = [mksrd(T1, pWO, SIZE['wo']) + [I(f's_add_u32 m0, s{sCB}, 16384'), I(f's_lshl_b32 s{a0}, s2, 14'), I(f's_lshl_b32 s{a1}, s{sW}, 8'), I(f's_add_u32 s{a0}, s{a0}, s{a1}'),
          I(f'buffer_load_dwordx4 v{vpa[0]}, s[{T1}:{T1+3}], s{a0} offen lds', 'pj0')]]
    pj += [I(f'buffer_load_dwordx4 v{vpa[j]}, s[{T1}:{T1+3}], s{a0} offen offset:{j*1024} lds', 'pj0') for j in range(1, 4)]
    pj2 = [mksrd(T2, pWD, SIZE['wd']) + [I(f's_add_u32 m0, s{sCB}, 20480'), I(f's_sub_u32 s{a0}, s{a0}, {144*16384}'), I('s_cmp_ge_u32 s2, 144'), I(f's_cselect_b32 s{a0}, s{a0}, {OOB:#x}'),
           I(f'buffer_load_dwordx4 v{vpa[0]}, s[{T2}:{T2+3}], s{a0} offen lds', 'pj1')]]
    pj2 += [I(f'buffer_load_dwordx4 v{vpa[j]}, s[{T2}:{T2+3}], s{a0} offen offset:{j*1024} lds', 'pj1') for j in range(1, 4)]
    pj3 = [mksrd(T1, pWG, SIZE['wg']) + [I(f's_and_b32 s{a2}, s2, 31'), I(f's_lshr_b32 s{a3}, s2, 5'), I(f's_lshl_b32 s{a3}, s{a3}, 2'), I(f's_add_u32 s{a3}, s{a3}, s{sW}'), I(f's_lshl_b32 s{a3}, s{a3}, 2'),
           I(f's_mul_i32 s{a0}, s{a2}, {16*3584}'), I(f's_lshl_b32 s{a1}, s{a3}, 5'), I(f's_add_u32 s{a0}, s{a0}, s{a1}'), I('s_cmp_lt_u32 s2, 224'), I(f's_cselect_b32 s{a0}, s{a0}, {OOB:#x}'),
           I(f's_mov_b32 m0, s{sCB}'), I('s_nop 0'), I(f'buffer_load_dwordx4 v{vpb[0]}, s[{T1}:{T1+3}], s{a0} offen lds', 'pj2')],
           I(f'buffer_load_dwordx4 v{vpb[1]}, s[{T1}:{T1+3}], s{a0} offen offset:1024 lds', 'pj2'),
           mksrd(T2, pWU, SIZE['wu']) + [I(f's_add_u32 m0, s{sCB}, 2048'), I('s_nop 0'), I(f'buffer_load_dwordx4 v{vpb[0]}, s[{T2}:{T2+3}], s{a0} offen lds', 'pj3')],
           I(f'buffer_load_dwordx4 v{vpb[1]}, s[{T2}:{T2+3}], s{a0} offen offset:1024 lds', 'pj3')]
    fl[32*5 + 31].append(W([cfrag(kt, 20+s) for s in range(4) for kt in range(2)]))
    fl[32*6 + 8].append(W([cfrag(kt, 24+s) for s in range(4) for kt in range(2)]))
    items += [dict(e=32*6, d=32*6 + 19, ops=pj, c='pj'), dict(e=32*6 + 8, d=32*6 + 19, ops=pj2, c='pj'), dict(e=32*7, d=32*7 + 19, ops=pj3, c='pj')]
    jobs = []; a0_ = a0; res = lambda: [40, 41, 52][len(jobs) % 3]
    for ct in range(4):
        a0 = res()
        jobs.append((vta, 16384 + ct*64, 8*256, [I(f's_lshl_b32 s{a0}, s{sW}, 2'), I(f's_add_u32 s{a0}, s{a0}, {ct}'), I(f's_lshl_b32 s{a0}, s{a0}, 8'), I(f's_add_u32 s{a0}, s{a0}, s2'),
                     I(f's_lshl_b32 s{a0}, s{a0}, 10'), I(f's_add_u32 s{a0}, s{a0}, {WS_WOT:#x}')]))
    for ct in range(4):
        a0 = res()
        jobs.append((vta, 20480 + ct*64, 8*256, [I(f's_lshl_b32 s{a0}, s{sW}, 2'), I(f's_add_u32 s{a0}, s{a0}, {ct}'), I(f's_mul_i32 s{a0}, s{a0}, 112'), I(f's_add_u32 s{a0}, s{a0}, s2'),
                     I(f's_lshl_b32 s{a0}, s{a0}, 10'), I(f's_add_u32 s{a0}, s{a0}, {WS_WDT - 144*1024:#x}'), [I('s_cmp_ge_u32 s2, 144'), I(f's_cselect_b32 s{a0}, s{a0}, {OOB:#x}')]]))
    for t in range(4):
        a0 = res()
        jobs.append((vtb, t*32, 4*128, [I(f's_add_u32 s{a0}, s{a3}, {t}'), I(f's_mul_i32 s{a1}, s{a0}, 9363'), I(f's_lshr_b32 s{a1}, s{a1}, 16'),
              I(f's_mul_i32 s{a4}, s{a1}, 7'), I(f's_sub_u32 s{a0}, s{a0}, s{a4}'), I(f's_mul_i32 s{a1}, s{a1}, 224'),
              I(f's_lshl_b32 s{a4}, s{a2}, 2'), I(f's_add_u32 s{a4}, s{a4}, s{a0}'), I(f's_lshl_b32 s{a5}, s{a0}, 5'), I(f's_add_u32 s{a5}, s{a5}, s{a2}'),
              [I(f's_cmp_lt_u32 s{a0}, 4'), I(f's_cselect_b32 s{a0}, s{a4}, s{a5}')], I(f's_add_u32 s{a0}, s{a0}, s{a1}'),
              I(f's_lshl_b32 s{a0}, s{a0}, 10'), I(f's_add_u32 s{a0}, s{a0}, {WS_WGUT:#x}'), [I('s_cmp_lt_u32 s2, 224'), I(f's_cselect_b32 s{a0}, s{a0}, {OOB:#x}')]]))
    g = 32*8 + 12
    for k, (va, o, d, sal) in enumerate(jobs):
        r = 240 + 4 * (k % 3); a0 = [40, 41, 52][k % 3]
        if k in (0, 8): fl[g - 1].append(W(tags=['pj1' if k == 0 else 'pj3']))
        fl[g].append(I(f'ds_read_b64_tr_b16 v[{r}:{r+1}], v{va} offset:{o}')); fl[g + 1].append(I(f'ds_read_b64_tr_b16 v[{r+2}:{r+3}], v{va} offset:{o+d}'))
        per = 1 if len(sal) < 9 else 2
        for q in range(0, len(sal), per):
            for x in sal[q:q+per]: fl[g + q // per].append(x)
        items.append(dict(e=g + 8, d=g + 30, c='pjs', ops=[[W([f'v[{r}:{r+3}]']), I(f'buffer_store_dwordx4 v[{r}:{r+3}], v{vL16}, s[{WS}:{WS+3}], s{a0} offen sc1', 'pjs')]]))
        g += 12
    a0 = a0_
    KVP = opt.get('kvp', 19)
    bar[KVP][0].tags.update(['k01', 'k23', 'v1', 'v2', 'pjs'])
    items.append(dict(e=32*KVP + BG + 1, d=32*KVP + BG + 2, ops=[[I(f's_lshl_b32 s{a0}, s{sH}, 7'), I(f's_lshl_b32 s{a1}, s{sI}, 2'), I(f's_add_u32 s{a0}, s{a0}, s{a1}'), I(f's_add_u32 s{a0}, s{a0}, {WS_FL + FKV:#x}'), flag_store(a0, vNon)]]))
    pkv = Poll(name, vfa + 1, sU[3], vfl)
    items.append(dict(e=32*(KVP + 1) + 12, d=32*(KVP + 1) + 20, ops=[[I(f's_lshl_b32 s{sU[3]}, s{sH}, 7'), I(f's_add_u32 s{sU[3]}, s{sU[3]}, {WS_FL + FKV:#x}'), pkv.load()]]))
    gk = 32*21 + 2
    fl[gk].append(pkv.check()); pkv.slow(slow)
    for n in range(3):
        dm = kv_dma(f'kv{n}_')
        items += [dict(e=gk + 1, d=NM - 13, ops=dm[0:4], c='kv', sp=3), dict(e=gk + 1, d=NM - 13, ops=dm[4:9], c='kv', sp=3)]
    gend = edf(fl, items, 32*6)
    print(f'[{name[-14:]}] vmem stream ends at gap', gend)
    S = {('A', 0): 0, ('A', 1): 16, ('B', 0): 32, ('B', 1): 48}
    O = {'A': 64, 'B': 128}; NEG = {'A': 192, 'B': 208}
    lsum = {'A': 233, 'B': 234}; vPrev, vCur, vNI = 235, 236, 237; vM = {'A': 238, 'B': 239}; TMP = 240
    Q = {'A': 0, 'B': 32}; FR, DR = 64, 96
    MASK = 16; LK0, LK1 = 48, 50
    sCur, sJ, sJA, sJB, sD0, sD1, sDB0, sDB1, sCA, sCBx, sFlag, sJF = 60, 61, 62, 3, 4, 5, 6, 7, 64, 65, 66, 67
    fr = lambda F: rng('a', FR + 4 * (F % 8), 4)
    su = []
    for r in range(16): su.append(I(f'v_cmp_gt_i32 s[{MASK+2*r}:{MASK+2*r+1}], {8*(r>>2) + (r&3)}, v{vfa+3}'))
    su += [I(f'v_mov_b32 v{vNI}, 0xff800000'), I(f'v_mov_b32 v{vCur}, v{vL16}'), I(f'v_mov_b32 v{vPrev}, v{vL16}'), I(f'v_mov_b32 v{lsum["A"]}, 0'), I(f'v_mov_b32 v{lsum["B"]}, 0')]
    sb = Block()
    sb(f's_mov_b32 s{sCur}, 0\ns_mov_b32 s{sFlag}, 0\ns_lshl_b32 s{sJA}, s{sI}, 1\ns_sub_u32 s{sJB}, 32, s{sJA}\ns_add_u32 s{sJA}, s{sJA}, 2\ns_mov_b32 s{sJF}, s{sJA}')
    sb(f's_lshl_b32 s68, s{sI}, 2\ns_add_u32 s69, s68, s{sW}\ns_sub_u32 s68, 60, s68\ns_add_u32 s68, s68, s{sW}')
    su += [[x] for x in sb.l]
    for (rt, d0, d1) in ((69, sD0, sD1), (68, sDB0, sDB1)):
        su.append([I(f's_lshr_b32 s70, s{rt}, 1'), I(f's_bitcmp1_b32 s{rt}, 0'), I(f's_cselect_b32 s{d0}, -1, s70'), I(f's_cselect_b32 s{d1}, s70, -1')])
    sb = Block()
    sb(f's_lshl_b32 s70, s{sH}, 13\ns_add_u32 s70, s70, {WS_CTX:#x}\ns_lshl_b32 s{sCA}, s69, 18\ns_add_u32 s{sCA}, s{sCA}, s70\ns_lshl_b32 s{sCBx}, s68, 18\ns_add_u32 s{sCBx}, s{sCBx}, s70')
    su += [[x] for x in sb.l]
    for k, x in enumerate(su): fl[32*22 + 4 + k].append(x)
    fl[NM - 12].append([W(tags=['kv0_1']), I('s_barrier')])
    def frag_read(F):
        q, k = divmod(F, 8)
        base, off = [(vCur, k*1024), (vPrev, 24576 + k*1024), (vCur, 8192 + k*1024), (vCur, 16384 + k*1024)][q]
        return I(f'ds_read_b128 {fr(F)}, v{base} offset:{off}')
    for k in range(8): fl[NM - 10 + k].append(frag_read(k))
    if ts.on:
        for n in (8, 16): fl[32*n].append(ts.item())
    assert all(not fl[g] for g in range(NM, NM + 40))
    proj = Block('proj'); proj.add(order_gap(fl[-1])); weave(proj, M, fl)
    rep = [('proj', M, fl)]

    p1 = Block('p1'); b = p1
    ts.mark(b)
    def conv(t, s):
        src = O[t] + 16 * (s >> 1) + 8 * (s & 1); tmp = TMP + (4 if t == 'B' else 0)
        return [I(f'v_cvt_pk_bf16_f32 v{tmp+k}, v{src+2*k}, v{src+2*k+1}') for k in range(4)] + [I(f'v_accvgpr_write_b32 a{Q[t]+4*s+k}, v{tmp+k}') for k in range(4)]
    qf = lambda t, s: rng('a', Q[t] + 4 * s, 4)
    sreg = lambda t, p: rng('v', S[(t, p)], 16)
    b('s_nop 3'); b.add(conv('A', 0)); b.add(conv('B', 0))
    LAF = 6
    for s in range(8):
        b.w(fr(s))
        for t in 'AB':
            b.add(mfma(sreg(t, 0), fr(s), qf(t, s), 0 if s == 0 else sreg(t, 0)))
            if t == 'B' and s < LAF: b.add(frag_read(16 + s))
            if s < 7: b.add(conv(t, s + 1))
    p2 = Block('p2'); b = p2
    b('s_nop 7\ns_nop 3')
    b(f's_cmp_lg_u32 s{sD0}, 0\ns_cbranch_scc1 L_nofix0_{name}\ns_call_b64 s[{LK0}:{LK0+1}], L_fixA0_{name}\nL_nofix0_{name}:')
    for t in 'AB':
        x = S[(t, 0)]; m = vM[t]
        b(f'v_max3_f32 v{m}, v{x}, v{x+1}, v{x+2}')
        for k in range(3, 15, 2): b(f'v_max3_f32 v{m}, v{m}, v{x+k}, v{x+k+1}')
        b(f'v_max_f32 v{m}, v{m}, v{x+15}')
    b(f'v_mov_b32 v{TMP}, v{vM["A"]}\nv_mov_b32 v{TMP+1}, v{vM["B"]}\ns_nop 0')
    b(f'v_permlane32_swap_b32 v{TMP}, v{vM["A"]}\nv_permlane32_swap_b32 v{TMP+1}, v{vM["B"]}\ns_nop 0')
    b(f'v_max_f32 v{vM["A"]}, v{vM["A"]}, v{TMP}\nv_max_f32 v{vM["B"]}, v{vM["B"]}, v{TMP+1}')
    b(f'v_sub_f32 v{vM["A"]}, 0, v{vM["A"]}\nv_sub_f32 v{vM["B"]}, 0, v{vM["B"]}')
    for t in 'AB':
        for r in range(16): b(f'v_add_f32 v{S[(t,0)]+r}, v{S[(t,0)]+r}, v{vM[t]}')
    for r in range(16): b(f'v_mov_b32 v{NEG["B"]+r}, v{vM["B"]}')
    b(f's_cmp_eq_u32 s{sD0}, 0\ns_cbranch_scc1 L_keepneg_{name}')
    for r in range(16): b(f'v_mov_b32 v{NEG["A"]+r}, v{vM["A"]}')
    b(f'L_keepneg_{name}:')
    ex = lambda t, p, e: I(f'v_exp_f32 v{S[(t,p)]+e}, v{S[(t,p)]+e}')
    ad = lambda t, p, e: I(f'v_add_f32 v{lsum[t]}, v{lsum[t]}, v{S[(t,p)]+e}')
    def cv(t, p, k):
        x = S[(t, p)] + 8 * (k >> 2); k &= 3
        return I(f'v_cvt_pk_bf16_f32 v{x+k}, v{x+2*k}, v{x+2*k+1}')
    def sm_seq(t, p, part):
        out = []
        for e in (range(7) if part == 1 else range(7, 16)):
            out.append(ex(t, p, e))
            if e >= 1: out.append(ad(t, p, e - 1))
            if e >= 2 and e % 2 == 0: out.append(cv(t, p, e // 2 - 1))
        if part == 2: out += [I('s_nop 0'), ad(t, p, 15), cv(t, p, 7)]
        return out
    for x, y in zip(sm_seq('A', 0, 1), sm_seq('B', 0, 1)): b.add([x, y])
    def place(fl, g0, tiles, p, part):
        nt = len(tiles)
        for ti, t in enumerate(tiles):
            for e in (range(7) if part == 1 else range(7, 16)):
                g = g0 + ((9 + e if part == 1 else e - 7) if nt == 1 else (17 + 2 * e + ti if part == 1 else 2 * (e - 7) + ti))
                fl[g].append(ex(t, p, e))
                if e >= 1: fl[g].append(ad(t, p, e - 1))
                if e >= 2 and e % 2 == 0: fl[g].append(cv(t, p, e // 2 - 1))
            if part == 2: fl[g + nt] += [ad(t, p, 15), cv(t, p, 7)]
    def body(tiles, first=False):
        nt = len(tiles); M = []; fl = {g: [] for g in range(-1, 33 * nt)}
        Fs = range(16, 32) if first else range(32)
        pos = {}
        for F in Fs:
            q, k = divmod(F, 8); pos[F] = len(M)
            for t in tiles:
                if q % 2 == 0:
                    d = sreg(t, q // 2); M.append(mfma(d, fr(F), qf(t, k), rng('v', NEG[t], 16) if k == 0 else d))
                else:
                    u, dt = divmod(k, 4); p = 1 if q == 1 else 0
                    d = rng('v', O[t] + 16 * dt, 16)
                    M.append(mfma(d, fr(F), rng('v', S[(t, p)] + 8 * u, 4), 0 if (first and u == 0) else d))
        n = len(M)
        for F in Fs:
            if nt == 2: fl[pos[F] - 1].insert(0, W([fr(F)]))
            elif F % 2 == 0: fl[pos[F] - 1].insert(0, W([fr(F), fr(F + 1)]))
            fl[pos[F] + nt - 1].append(frag_read((F + LAF) % 32))
        fl[n - 1].insert(0, W([fr(0), fr(1)] if nt == 1 else [fr(0)]))
        g = pos[32 - LAF] + nt - 2
        fl[g - 3].append(I(f's_add_u32 s{sCur}, s{sCur}, 32768')); fl[g - 1].append(I(f's_and_b32 s{sCur}, s{sCur}, 0x1ffff'))
        fl[g - 1].append(I(f'v_mov_b32 v{vPrev}, v{vCur}')); fl[g].append(I(f'v_add_u32 v{vCur}, s{sCur}, v{vL16}'))
        for h in ([1] if first else [0, 1]):
            g0 = pos[16 * h]
            place(fl, g0, tiles, 1 - h, 2)
            t0 = tiles[0]; gc = g0 + (9 if nt == 1 else 17)
            fl[gc - 1].append(I(f's_cmp_eq_u32 s{sJ}, s{(sD0, sD1)[h]}'))
            fl[gc].insert(0, [I(f's_cbranch_scc1 L_fix{t0}{h}_{name}'), I(f'L_ret{t0}{h}{"f" if first else ""}_{name}:')])
            place(fl, g0, tiles, h, 1)
        gb = pos[16] - 1 if not first else 1
        if nt == 1:
            fl[gb - 1].append(I(f's_cmp_eq_u32 s{sJ}, s{sJF}'))
            fl[gb].append([I(f's_cbranch_scc1 L_w16_{name}'), I('s_waitcnt vmcnt(8)'), I(f'L_w16r_{name}:'), I('s_barrier')])
        else: fl[gb].append([I('s_waitcnt vmcnt(8)'), I('s_barrier')])
        dm = kv_dma('kvg')
        if nt == 1: a_, c_, u_ = (1, 3, 5, 7), (0, 2, 4, 6), (10, 11, 12)
        else: a_, c_, u_ = (3, 8, 13, 18), (2, 7, 12, 20), (22, 24, 26)
        for k, x in zip(a_, dm[0:4]): fl[gb + k].append(x)
        if not first:
            for k, x in zip(c_, dm[4:8]): fl[k].append(x)
            for k, x in zip(u_, dm[8]): fl[k].append(x)
        return M, fl
    slow(f'L_w16_{name}:\ns_waitcnt vmcnt(16)\ns_branch L_w16r_{name}')
    M0_, f0 = body(['A', 'B'], first=True)
    h0 = Block('h0')
    h0(f's_mov_b32 s{sJ}, 0\ns_getpc_b64 s[{LK1}:{LK1+1}]\nL_pc0_{name}:\ns_add_u32 s{LK1}, s{LK1}, L_retA1f_{name}-L_pc0_{name}\ns_addc_u32 s{LK1+1}, s{LK1+1}, 0')
    h0.add(order_gap(f0[-1])); weave(h0, M0_, f0)
    def links(b, t):
        b(f's_getpc_b64 s[{LK0}:{LK0+1}]\nL_pc{t}_{name}:\ns_add_u32 s{LK1}, s{LK0}, L_ret{t}1_{name}-L_pc{t}_{name}\ns_addc_u32 s{LK1+1}, s{LK0+1}, 0')
        b(f's_add_u32 s{LK0}, s{LK0}, L_ret{t}0_{name}-L_pc{t}_{name}\ns_addc_u32 s{LK0+1}, s{LK0+1}, 0')
    h0(f's_mov_b32 s{sJ}, 1'); links(h0, 'A')
    def loop(tiles, lab, send):
        M, fl = body(tiles); n = len(M)
        blk = Block(lab); blk(f'.p2align 4\n{lab}:')
        fl[n - 4].append(I(f's_add_u32 s{sJ}, s{sJ}, 1')); fl[n - 2].append(I(f's_cmp_lt_u32 s{sJ}, s{send}'))
        weave(blk, M, fl); blk(f's_cbranch_scc1 {lab}')
        rep.append((lab, M, fl))
        return blk
    dual = loop(['A', 'B'], f'L_dual_{name}', sJA)
    single = loop(['B'], f'L_single_{name}', sJB)
    def drain(t, soff, extra=()):
        blk = Block('drain' + t); b = blk
        df = lambda k: rng('a', DR + 4 * k, 4)
        for k in range(8): b(f'ds_read_b128 {df(k)}, v{vPrev} offset:{24576 + k*1024}')
        b.add(list(extra))
        sq = sm_seq(t, 1, 2)
        b.add(sq[:5]); sq = sq[5:]; b('s_nop 0')
        per = (len(sq) + 3) // 4
        for k in range(8):
            u, dt = divmod(k, 4)
            if k == 4: b('s_nop 1')
            b.w(df(k)); d = rng('v', O[t] + 16 * dt, 16)
            b.add(mfma(d, df(k), rng('v', S[(t, 1)] + 8 * u, 4), d))
            if k < 4: b.add(sq[k * per:(k + 1) * per])
        l = lsum[t]
        b(f'v_mov_b32 v{TMP}, v{l}\ns_nop 1\nv_permlane32_swap_b32 v{TMP}, v{l}\ns_nop 0\nv_add_f32 v{l}, v{l}, v{TMP}\nv_rcp_f32 v{TMP}, v{l}')
        b(f'v_cmp_nge_f32 vcc, {fb(2.0**64)}, v{l}\ns_nop 4\ns_or_b32 s{sFlag}, s{sFlag}, vcc_lo\ns_or_b32 s{sFlag}, s{sFlag}, vcc_hi')
        for dt in range(4):
            for u in range(2):
                x = O[t] + 16 * dt + 8 * u
                for k in range(8): b(f'v_mul_f32 v{x+k}, v{x+k}, v{TMP}')
                for k in range(4): b(f'v_cvt_pk_bf16_f32 v{x+k}, v{x+2*k}, v{x+2*k+1}')
                ks = 2 * dt + u
                if ks == 4: b(f's_add_u32 s{soff}, s{soff}, 4096')
                b(f'buffer_store_dwordx4 {rng("v", x, 4)}, v{vL16}, s[{WS}:{WS+3}], s{soff} offen offset:{(ks&3)*1024} sc1', 'ctx' + t)
        return blk
    dA = drain('A', sCA)
    dA(f's_mov_b32 s{sD0}, s{sDB0}\ns_mov_b32 s{sD1}, s{sDB1}'); links(dA, 'B'); dA.w(fr(0), fr(1))
    vpa2 = TMP + 2; vpd = TMP + 4
    pall = Poll(name, vpa2, 70, vpd, 4)
    dB = drain('B', sCBx, [I(f'v_lshrrev_b32 v{vpa2}, 5, v{vL16}'), I(f'v_lshlrev_b32 v{vpa2}, 7, v{vpa2}'), I(f'v_and_b32 v{vpa2+1}, 16, v{vL16}'), I(f'v_add_u32 v{vpa2}, v{vpa2}, v{vpa2+1}'),
                           I(f's_mov_b32 s70, {WS_FL + FKV:#x}'), pall.load()])
    if ts.on: dB.l = ts.item() + dB.l
    pall.slow(slow)
    fix = Block('fix')
    for t in 'AB':
        for p in range(2):
            fix(f'L_fix{t}{p}_{name}:')
            for r in range(16): fix(f'v_cndmask_b32 v{S[(t,p)]+r}, v{S[(t,p)]+r}, v{vNI}, s[{MASK+2*r}:{MASK+2*r+1}]')
            for r in range(16): fix(f'v_mov_b32 v{NEG[t]+r}, v{vNI}')
            lk = (LK0, LK1)[p]
            fix(f's_setpc_b64 s[{lk}:{lk+1}]')
    import fused_tail
    tail_blocks = fused_tail.gen_tail(name, opt, ts, slow, pall, rep)
    end = Block('end'); end(f'L_end_{name}:\ns_endpgm')
    blocks = [pro, tagb, pro2, proj, p1, p2, h0, dual, dA, single, dB] + tail_blocks + [end, fix, slow]
    head = [pro, pro2, proj, p1, p2, h0]
    paths = [head + [dual, dA, single, single, dB] + tail_blocks, head + [dual, dual, dual, dA, single, single, single, dB] + tail_blocks,
             [pro, tagb, pro2, proj]]
    txt = check(name, paths, blocks)
    for lab, M, fl in rep: print(f'[{name}] {lab} overflow', gap_report(M, fl))
    return wrap(name, txt)
```

```python
from common import *
import fused as FU
from fused import WS, sW, sH, sI, sNon, vL16, vF0, WS_FL, FC, FH, FA, Poll, flag_store, fb, vstream
import math

def gen_tail(name, opt, ts, slow, pall, rep):
    R = 16
    sRB, sCb = 68, 69
    so = [60, 61, 62, 63]; sT = 64; s32k = 65
    vL2, vrm, vfm, vw, vrd, vst, vpl = 225, 192, 193, 194, 195, 196, 197
    RES, HK = 200, 240
    ACC, CR = 0, 64
    acc = lambda ct, rt: rng('v', ACC + 16 * (2 * ct + rt), 16)
    vNon = 236
    blocks = []
    d0 = Block('d0'); b = d0
    b(f's_load_dwordx2 s[40:41], s[0:1], {ARG["x"]}\ns_load_dwordx2 s[42:43], s[0:1], {ARG["out"]}')
    b(f's_and_b32 s{sRB}, s2, 7\ns_lshr_b32 s{sCb}, s2, 3\ns_lshl_b32 s{sRB}, s{sRB}, 2\ns_lshr_b32 s3, s{sCb}, 3\ns_add_u32 s{sRB}, s{sRB}, s3\ns_and_b32 s{sCb}, s{sCb}, 7')
    def streams(NK, offA, offW):
        return (f's_mul_i32 s3, s{sW}, {NK//4*1024}\ns_mul_i32 s{so[0]}, s{sRB}, {2*NK*1024}\ns_add_u32 s{so[0]}, s{so[0]}, s3\ns_add_u32 s{so[0]}, s{so[0]}, {offA:#x}\ns_add_u32 s{so[1]}, s{so[0]}, {NK*1024}',
                f's_mul_i32 s3, s{sW}, {NK//4*1024}\ns_mul_i32 s{so[2]}, s{sCb}, {2*NK*1024}\ns_add_u32 s{so[2]}, s{so[2]}, s3\ns_add_u32 s{so[2]}, s{so[2]}, {offW:#x}\ns_add_u32 s{so[3]}, s{so[2]}, {NK*1024}')
    sa, sw = streams(256, WS_CTX, WS_WOT)
    b(sa); b(sw); b(f'v_add_u32 v{vL2}, 4096, v{vL16}\nv_mov_b32 v{vNon}, s{sNon}')
    b.add(pall.check())
    def ld(dst, k, s, last):
        x = I(f'buffer_load_dwordx4 {dst}, v{vL16 if (s & 7) < 4 else vL2}, s[{WS}:{WS+3}], s{so[k]} offen offset:{(s&3)*1024} sc1')
        return [x, I(f's_add_u32 s{so[k]}, s{so[k]}, 8192')] if (s & 7) == 7 else [x]
    wD = lambda s, ct: rng('a', 8 * ((s + 8) % 32) + 4 * ct, 4)
    LC = opt.get('lc', 14)
    cD = lambda s, rt: rng('v', CR + 8 * (s % LC) + 4 * rt, 4)
    for s in range(16):
        for ct in range(2): b.add(ld(wD(s, ct), 2 + ct, s, 0))
    b(f'v_lshrrev_b32 v43, 7, v{vL16}\ns_lshl_b32 s3, s{sW}, 3\nv_add_u32 v43, s3, v43\nv_bfe_u32 v44, v{vL16}, 4, 3')
    b(f's_lshl_b32 s3, s{sRB}, 16\ns_lshl_b32 s4, s{sCb}, 7\ns_add_u32 s4, s4, s3\nv_lshlrev_b32 v45, 4, v44\nv_lshl_add_u32 v45, v43, 10, v45\nv_add_u32 v{vrm}, s4, v45')
    b(f's_lshl_b32 s4, s{sCb}, 12\ns_add_u32 s4, s4, s3\ns_add_u32 s4, s4, {WS_H:#x}')
    b(f'v_and_b32 v46, 1, v44\nv_lshl_add_u32 v46, v46, 5, v43\nv_lshlrev_b32 v46, 4, v46\nv_lshrrev_b32 v47, 1, v44\nv_lshl_add_u32 v46, v47, 10, v46\nv_add_u32 v{vfm}, s4, v46')
    b(f's_mul_i32 s4, s{sW}, 17408\nv_bfe_u32 v47, v{vL16}, 4, 5\nv_mul_u32_u24 v47, 272, v47\nv_lshrrev_b32 v48, 9, v{vL16}\nv_lshl_add_u32 v47, v48, 4, v47\nv_add_u32 v{vw}, s4, v47')
    b(f'v_mul_u32_u24 v47, 272, v43\nv_lshl_add_u32 v{vrd}, v44, 5, v47')
    b(f's_lshl_b32 s3, s{sRB}, 12\ns_lshl_b32 s4, s{sCb}, 3\ns_add_u32 s3, s3, s4\ns_add_u32 s3, s3, {WS_ST:#x}\nv_lshlrev_b32 v47, 6, v43\nv_add_u32 v47, s3, v47')
    b(f'v_cmp_eq_u32 vcc, 0, v44\nv_mov_b32 v48, {FU.OOB:#x}\ns_mov_b32 s{s32k}, 32768\nv_cndmask_b32 v{vst}, v48, v47, vcc')
    b(f'v_bfe_u32 v{vpl}, v{vL16}, 4, 5\nv_lshlrev_b32 v{vpl}, 2, v{vpl}\nv_and_b32 v{vpl+1}, 63, v{vpl}')
    b('s_waitcnt lgkmcnt(0)'); srd_from_ptr(b, R, 40, SIZE['x'])
    b.w(tags=['ctxB']); b('s_barrier')
    b(f's_lshl_b32 s3, s{sI}, 7\ns_lshl_b32 s4, s{sH}, 2\ns_add_u32 s3, s3, s4\ns_add_u32 s3, s3, {WS_FL + FC:#x}'); b.add(flag_store(3, vNon))
    ts.mark(b)
    for s in range(16, 32):
        if s == 28: b.w(wD(3, 1))
        for ct in range(2): b.add(ld(wD(s, ct), 2 + ct, s, 0))
    b.w(wD(8, 1))
    b(f'buffer_load_dwordx4 v[{RES}:{RES+3}], v{vrm}, s[{R}:{R+3}], 0 offen\nbuffer_load_dwordx4 v[{RES+4}:{RES+7}], v{vrm}, s[{R}:{R+3}], s{s32k} offen')
    pc = Poll(name, vpl, 6, 210); pc.slow(slow)
    b(f's_lshr_b32 s3, s{sRB}, 1\ns_sub_u32 s4, 15, s3\ns_min_u32 s3, s3, s4\ns_lshl_b32 s3, s3, 7\ns_add_u32 s6, s3, {WS_FL + FC:#x}')
    b.add(pc.load()); b.add(pc.check())
    for s in range(LC):
        for rt in range(2): b.add(ld(cD(s, rt), rt, s, 0))
    sRT, sG, sWo, sWB, sM, sHo, sA, sC1 = 20, 21, 22, 23, 24, 25, 26, 27
    b(f's_and_b32 s{sRT}, s2, 1\ns_lshl_b32 s{sRT}, s{sRT}, 3\ns_bfe_u32 s3, s2, 0x30003\ns_add_u32 s28, s{sRT}, s3')
    b(f's_bfe_u32 s{sG}, s2, 0x20001\ns_lshl_b32 s{sG}, s{sG}, 2\ns_lshr_b32 s3, s2, 6\ns_add_u32 s{sG}, s{sG}, s3')
    b(f's_lshl_b32 s{sRT}, s28, 2\ns_add_u32 s{sRT}, s{sRT}, s{sW}')
    b(f's_mul_i32 s{sWo}, s{sG}, {224*1024}\ns_lshl_b32 s{sWB}, s{sW}, 13\ns_add_u32 s{sWo}, s{sWo}, s{sWB}\ns_add_u32 s{sWo}, s{sWo}, {WS_WGUT:#x}')
    slot = lambda n: ((n + 3) % 5) * 32768
    def w_dma(n):
        out = []
        for g in range(2):
            pre = [I(f's_add_u32 m0, s{sWB}, {slot(n) + g*4096}'), I(f's_add_u32 s{sM}, s{sWo}, {n*32768 + g*4096}')]
            for j in range(4):
                x = I(f'buffer_load_dwordx4 v{vL16}, s[{WS}:{WS+3}], s{sM} offen offset:{j*1024} sc1 lds', f'e{n}_{g}')
                out.append(pre + [x] if j == 0 else x)
        return out
    blocks.append(d0)
    dm = Block('dmain'); b = dm
    pre = w_dma(0) + w_dma(1)
    for s in range(64):
        for (ct, rt) in ((0, 0), (0, 1), (1, 1), (1, 0)):
            b.w(cD(s, rt), wD(s, ct))
            b.add(mfma(acc(ct, rt), wD(s, ct), cD(s, rt), 0 if s == 0 else acc(ct, rt)))
            if s == 0 and (ct, rt) == (0, 0): ts.mark(b)
            if (ct, rt) == (0, 1) and s + 32 < 64: b.add(ld(wD(s, 0), 2, s + 32, 0))
            if (ct, rt) == (1, 1) and s + LC < 64: b.add(ld(cD(s, 1), 1, s + LC, 0))
            if (ct, rt) == (1, 0):
                if s + LC < 64: b.add(ld(cD(s, 0), 0, s + LC, 0))
                if s + 32 < 64: b.add(ld(wD(s, 1), 3, s + 32, 0))
            if s >= 48 and (ct, rt) == (0, 0): b.add(pre.pop(0))
    blocks.append(dm)
    def reduce_epi(res_regs, store):
        ep = Block('epi'); b = ep
        b('s_nop 7\ns_nop 3')
        for ct in range(2):
            for rt in range(2):
                for j in range(4):
                    a = ACC + 16 * (2 * ct + rt) + 4 * j
                    b(f'ds_write_b128 v{vw}, v[{a}:{a+3}] offset:{rt*32*272 + (32*ct + 8*j)*4}')
        b('s_waitcnt lgkmcnt(0)\ns_barrier')
        P = 64
        for q in range(2):
            for w in range(4):
                for k in range(2):
                    a = P + 32 * q + 8 * w + 4 * k
                    b(f'ds_read_b128 v[{a}:{a+3}], v{vrd} offset:{w*17408 + q*32*272 + 16*k}')
        b.w(f'v[{res_regs}:{res_regs+7}]')
        for q in range(2):
            u = 16 + 8 * q
            for k in range(4): b(f'v_lshlrev_b32 v{u+2*k}, 16, v{res_regs+4*q+k}\nv_and_b32 v{u+2*k+1}, 0xffff0000, v{res_regs+4*q+k}')
        for q in range(2):
            x = P + 32 * q; u = 16 + 8 * q
            for k in range(0, 8, 2): b(f'v_pk_add_f32 v[{x+k}:{x+k+1}], v[{x+k}:{x+k+1}], v[{x+8+k}:{x+9+k}]')
            for k in range(0, 8, 2): b(f'v_pk_add_f32 v[{x+16+k}:{x+17+k}], v[{x+16+k}:{x+17+k}], v[{x+24+k}:{x+25+k}]')
            for k in range(0, 8, 2): b(f'v_pk_add_f32 v[{x+k}:{x+k+1}], v[{x+k}:{x+k+1}], v[{u+k}:{u+k+1}]')
            for k in range(0, 8, 2): b(f'v_pk_add_f32 v[{x+k}:{x+k+1}], v[{x+k}:{x+k+1}], v[{x+16+k}:{x+17+k}]')
            for k in range(4): b(f'v_cvt_pk_bf16_f32 v{HK+4*q+k}, v{x+2*k}, v{x+2*k+1}')
            b(store(q), 'out')
        return auto_waits(ep)
    ep = reduce_epi(RES, lambda q: f'buffer_store_dwordx4 v[{HK+4*q}:{HK+4*q+3}], v{vfm}, s[{WS}:{WS+3}], {"s%d" % s32k if q else "0"} offen sc1')
    if ts.on: ep.l = ts.item() + ep.l
    b = ep
    def red(rs):
        for d in ('quad_perm:[1,0,3,2]', 'quad_perm:[2,3,0,1]', 'row_half_mirror'):
            b('s_nop 0')
            for r in rs: b(f'v_add_f32_dpp v{r}, v{r}, v{r} {d} row_mask:0xf bank_mask:0xf')
    for q in range(2):
        u = 16 + 8 * q; s0 = 40 + 2 * q
        for k in range(4): b(f'v_lshlrev_b32 v{u+2*k}, 16, v{HK+4*q+k}\nv_and_b32 v{u+2*k+1}, 0xffff0000, v{HK+4*q+k}')
        b(f'v_add_f32 v{s0}, v{u}, v{u+1}')
        for k in range(2, 8): b(f'v_add_f32 v{s0}, v{s0}, v{u+k}')
    b('s_nop 0'); red([40, 42])
    for q in range(2):
        u = 16 + 8 * q; s0 = 40 + 2 * q
        b(f'v_mul_f32 v44, 0xbc800000, v{s0}')
        for k in range(8): b(f'v_add_f32 v{u+k}, v{u+k}, v44')
        b(f'v_mul_f32 v{s0+1}, v{u}, v{u}')
        for k in range(1, 8): b(f'v_fmac_f32 v{s0+1}, v{u+k}, v{u+k}')
    b('s_nop 0'); red([41, 43])
    b(f'buffer_store_dwordx2 v[40:41], v{vst}, s[{WS}:{WS+3}], 0 offen sc1\nbuffer_store_dwordx2 v[42:43], v{vst}, s[{WS}:{WS+3}], 0 offen offset:2048 sc1', 'out')
    b.w(tags=['out']); b('s_barrier')
    b(f's_lshr_b32 s3, s{sRB}, 1\ns_lshl_b32 s3, s3, 7\ns_and_b32 s4, s{sRB}, 1\ns_lshl_b32 s4, s4, 3\ns_add_u32 s4, s4, s{sCb}\ns_lshl_b32 s4, s4, 2\ns_add_u32 s3, s3, s4\ns_add_u32 s3, s3, {WS_FL + FH:#x}')
    b.add(flag_store(3, vNon))
    blocks.append(ep)
    HR, EACC, GT, NT = 0, 128, 208, 216
    accb = lambda t: EACC + 16 * (t if t < 5 else t - 5)
    vB = [vL16, 226, 227]; vRs, vNm, vC0, vS = 228, 229, 230, 231
    keep = {vrm: 232, vw: 233, vrd: 234, vpl + 1: 235}
    SR = 128
    wf = lambda F: rng('a', 4 * (F % 8), 4)
    hf = lambda s: rng('v', HR + 4 * s, 4)
    e0 = Block('e0'); b = e0
    for n in (2, 3, 4): b.add(w_dma(n))
    for k, v in keep.items(): b(f'v_mov_b32 v{v}, v{k}')
    b(f'v_add_u32 v{vB[1]}, 0x10000, v{vL16}\nv_add_u32 v{vB[2]}, 0x20000, v{vL16}')
    b(f's_lshl_b32 s{sHo}, s{sRT}, 15\ns_add_u32 s{sHo}, s{sHo}, {WS_H:#x}')
    b(f's_lshl_b32 s3, s{sRT}, 11\ns_add_u32 s3, s3, {WS_ST:#x}\nv_lshlrev_b32 v{vS}, 4, v{vpl}\nv_add_u32 v{vS}, s3, v{vS}')
    b(f's_mul_i32 s{sA}, s{sRT}, 112\ns_mul_i32 s3, s{sG}, 7\ns_add_u32 s{sA}, s{sA}, s3\ns_lshl_b32 s{sA}, s{sA}, 10\ns_add_u32 s{sA}, s{sA}, {WS_ACT:#x}')
    c0 = -2.0 * math.sqrt(2.0 / math.pi) * math.log2(math.e)
    b(f'v_mov_b32 v{vC0}, {fb(c0)}\ns_mov_b32 s{sC1}, {fb(c0 * 0.044715)}')
    sa6, sw6 = streams(112, WS_ACT, WS_WDT)
    b(sa6); b(sw6)
    srd_from_ptr(b, R, 42, SIZE['out'])
    ph = Poll(name, keep[vpl + 1], 6, 210); ph.slow(slow)
    b(f's_lshl_b32 s6, s28, 7\ns_add_u32 s6, s6, {WS_FL + FH:#x}')
    b.add(ph.load()); b.add(ph.check())
    ts.mark(b)
    for k in range(4): b(f'buffer_load_dwordx4 v[{SR+4*k}:{SR+4*k+3}], v{vS}, s[{WS}:{WS+3}], 0 offen offset:{16*k} sc1')
    def h_loads(n):
        out = []
        for k in range(8):
            x = I(f'buffer_load_dwordx4 {hf(8*n+k)}, v{vL16 if k < 4 else vL2}, s[{WS}:{WS+3}], s{sHo} offen offset:{(k&3)*1024} sc1')
            out.append([x, I(f's_add_u32 s{sHo}, s{sHo}, 8192')] if k == 7 else x)
        return out
    nh = opt.get('e_h', 2)
    for n in range(nh): b.add(h_loads(n))
    b.w(f'v[{SR}:{SR+15}]')
    b(f'v_add_f32 v{vNm}, v{SR}, v{SR+2}\nv_add_f32 v{vRs}, v{SR+1}, v{SR+3}')
    for k in range(2, 8): b(f'v_add_f32 v{vNm}, v{vNm}, v{SR+2*k}\nv_add_f32 v{vRs}, v{vRs}, v{SR+2*k+1}')
    b(f'v_mul_f32 v{vNm}, 0xbb000000, v{vNm}\nv_mov_b32 v{NT}, 0')
    for k in range(8): b(f'v_mul_f32 v{SR+2*k}, 0x3c800000, v{SR+2*k}\nv_add_f32 v{SR+2*k}, v{SR+2*k}, v{vNm}\nv_fmac_f32 v{NT}, v{SR+2*k}, v{SR+2*k}')
    b(f'v_fmac_f32 v{vRs}, 0x42800000, v{NT}\nv_mov_b32 v{NT}, {fb(1e-5)}\nv_fmac_f32 v{NT}, 0x3b000000, v{vRs}\nv_rsq_f32 v{vRs}, v{NT}\ns_nop 0\nv_mul_f32 v{vNm}, v{vNm}, v{vRs}')
    def norm(s):
        out = []
        for k in range(4):
            r = HR + 4 * s + k; a, c = NT + 2 * (k & 1), NT + 2 * (k & 1) + 1
            out += [I(f'v_lshlrev_b32 v{a}, 16, v{r}'), I(f'v_and_b32 v{c}, 0xffff0000, v{r}'), I(f'v_fma_f32 v{a}, v{a}, v{vRs}, v{vNm}'),
                    I(f'v_fma_f32 v{c}, v{c}, v{vRs}, v{vNm}'), I(f'v_cvt_pk_bf16_f32 v{r}, v{a}, v{c}')]
        return out
    def rd(F):
        n, f = divmod(F, 32); o = slot(n) + f * 1024
        return I(f'ds_read_b128 {wf(F)}, v{vB[o >> 16]} offset:{o & 0xffff}')
    LA = 6
    b.w(tags=['e4_1']); b('s_barrier')
    for F in range(LA): b.add(rd(F))
    b.w(hf(0)); b.add(norm(0))
    blocks.append(e0)
    M = []; fl = {g: [] for g in range(-1, 224)}
    for F in range(224):
        s, t = divmod(F, 4) if F < 128 else ((F - 128) % 32, 4 + (F - 128) // 32)
        d = rng('v', accb(t), 16)
        M.append(mfma(d, wf(F), hf(s), 0 if s == 0 else d))
        if F % 2 == 0: fl[F - 1].insert(0, W([wf(F), wf(F + 1)]))
        if F + LA < 224: fl[F].append(rd(F + LA))
    wF = lambda s, ct: rng('a', 32 + 8 * s + 4 * ct, 4)
    st = [(0, x) for n in range(nh, 4) for x in h_loads(n)]
    st += [(66, x) for x in w_dma(5)] + [(66, x) for x in w_dma(6)]
    st += [(66, ld(wF(s, ct), 2 + ct, s, 0)) for s in range(28) for ct in range(2)]
    gend = vstream(fl, st, 0)
    assert gend < 224, gend
    fl[64].append(I('s_barrier'))
    fl[32*4 + 22].append([W(tags=['e6_1']), I('s_barrier')])
    for s in range(1, 32):
        ops = norm(s)
        fl[4 * (s - 1) - 1].append(W([hf(s)]))
        for k in range(4): fl[4 * (s - 1) - 1 + k] += ops[5 * k:5 * k + 5]
    def gelu(t):
        a = accb(t); o = []
        o += [I(f'v_mul_f32 v{GT+r}, v{a+r}, v{a+r}') for r in range(8)]
        o += [I(f'v_fma_f32 v{GT+r}, v{GT+r}, s{sC1}, v{vC0}') for r in range(8)]
        o += [I(f'v_mul_f32 v{GT+r}, v{GT+r}, v{a+r}') for r in range(8)]
        o += [I(f'v_exp_f32 v{GT+r}, v{GT+r}') for r in range(8)]
        o += [I(f'v_add_f32 v{GT+r}, 1.0, v{GT+r}') for r in range(8)]
        o += [I(f'v_rcp_f32 v{GT+r}, v{GT+r}') for r in range(8)]
        o += [I(f'v_mul_f32 v{a+r}, v{a+r}, v{a+8+r}') for r in range(8)]
        o += [I(f'v_mul_f32 v{a+r}, v{a+r}, v{GT+r}') for r in range(8)]
        o += [I(f'v_cvt_pk_bf16_f32 v{a+8+k}, v{a+2*k}, v{a+2*k+1}') for k in range(4)]
        o.append(I(f'buffer_store_dwordx4 v[{a+8}:{a+11}], v{vL16 if t < 4 else vL2}, s[{WS}:{WS+3}], s{sA} offen offset:{(t&3)*1024} sc1', 'act'))
        return o
    g = 130; left = []
    ready = {0: 130, 1: 130, 2: 130, 3: 130, 4: 162, 5: 194, 6: 999}
    for t in range(7):
        ops = gelu(t)
        if left or ready[t] >= 224: left += ops; continue
        g = max(g, ready[t]); g, lf = pack(fl, ops, g, 224); left += lf
        if t == 0: assert g < 158 and not lf
        if t == 1: assert g < 190 and not lf
    em = Block('emain'); em.add(order_gap(fl[-1])); weave(em, M, fl)
    rep.append(('gateup', M, fl))
    n6 = len(gelu(6))
    if len(left) > n6: em.add(left[:-n6])
    em('s_nop 7\ns_nop 3'); em.add(left[-n6:])
    print(f'[{name}] gate/up exposed tail ops', len(left))
    b = em
    ts.mark(b)
    b.w(tags=['act']); b('s_barrier')
    b(f's_lshl_b32 s3, s28, 7\ns_lshl_b32 s4, s{sG}, 2\ns_add_u32 s3, s3, s4\ns_add_u32 s3, s3, {WS_FL + FA:#x}'); b.add(flag_store(3, vNon))
    blocks.append(em)
    f0 = Block('f0'); b = f0
    for k, v in keep.items(): b(f'v_mov_b32 v{k}, v{v}')
    pa = Poll(name, vpl + 1, 6, 210); pa.slow(slow)
    b(f's_lshr_b32 s6, s{sRB}, 1\ns_lshl_b32 s6, s6, 7\ns_add_u32 s6, s6, {WS_FL + FA:#x}')
    b.add(pa.load()); b.add(pa.check())
    for s in range(LC):
        for rt in range(2): b.add(ld(cD(s, rt), rt, s, 0))
    for s in range(28):
        for (ct, rt) in ((0, 0), (0, 1), (1, 1), (1, 0)):
            b.w(cD(s, rt), wF(s, ct))
            b.add(mfma(acc(ct, rt), wF(s, ct), cD(s, rt), 0 if s == 0 else acc(ct, rt)))
            if (ct, rt) == (1, 1) and s + LC < 28: b.add(ld(cD(s, 1), 1, s + LC, 0))
            if (ct, rt) == (1, 0) and s + LC < 28: b.add(ld(cD(s, 0), 0, s + LC, 0))
    blocks.append(f0)
    ep = reduce_epi(HK, lambda q: f'buffer_store_dwordx4 v[{HK+4*q}:{HK+4*q+3}], v{vrm}, s[{R}:{R+3}], {"s%d" % s32k if q else "0"} offen')
    if ts.on: ep('s_waitcnt vmcnt(0)')
    ts.flush(ep, 98, name)
    blocks.append(ep)
    return blocks
```

```python
import sys, importlib
from common import *
NAME = 'sequential_preLN__compressed_kv_cla__geglu_ffn__prompt'
HEAD = open('cdna_kernels/' + NAME + '.s.ref').read().split('; Override launch')[0]
def build(opt, kernels=None):
    ks = [('k1_kv', 'kvproj_kernel', 163840), ('k2_attn', 'attn_kernel', 163840), ('k3_oproj', 'oproj_kernel', 69632),
          ('k4_gu', 'gateup_kernel', 163840), ('k5_down', 'down_kernel', 69632)]
    if kernels: ks = [k for k in ks if k[0] in kernels]
    hdr = HEAD; body = '.amdgcn_target "amdgcn-amd-amdhsa--gfx950"\n.text\n'
    for mod, name, lds in ks:
        m = importlib.import_module(mod)
        hdr += f'; @launch kernel={name} grid=(256,1,1) block=(256,1,1) lds={getattr(m, "LDS", lds)}\n'
        body += m.gen(name, opt)
    return hdr + body
def build_fused(opt):
    import fused
    return HEAD + '; @launch grid=(256,1,1) block=(256,1,1) lds=163840\n.amdgcn_target "amdgcn-amd-amdhsa--gfx950"\n.text\n' + fused.gen(NAME + '_kernel', opt)
if __name__ == '__main__':
    out = sys.argv[1]
    opt = {}
    kernels = None
    for a in sys.argv[2:]:
        k, v = a.split('=')
        if k == 'kernels': kernels = v.split(',')
        else: opt[k] = eval(v)
    open(out, 'w').write(build_fused(opt) if opt.get('fused') else build(opt, kernels))
```

```python
import re

REG_RE = re.compile(r'^(-|abs\()?([vas])(\d+)\)?$')
RNG_RE = re.compile(r'^(-)?([vas])\[(\d+):(\d+)\]$')

def parse_reg(tok):
    tok = tok.strip()
    m = REG_RE.match(tok)
    if m: return [(m.group(2), int(m.group(3)))]
    m = RNG_RE.match(tok)
    if m: return [(m.group(2), i) for i in range(int(m.group(3)), int(m.group(4)) + 1)]
    if tok == 'vcc': return [('s', 'vcc')]
    if tok == 'exec': return [('s', 'exec')]
    if tok == 'm0': return [('s', 'm0')]
    return []

TRANS = ('v_exp_f32', 'v_log_f32', 'v_rcp_f32', 'v_rsq_f32', 'v_sqrt_f32')

class I:
    __slots__ = ('text', 'op', 'kind', 'defs', 'uses', 'tag', 'n', 'info')
    def __init__(self, text, tag=None):
        self.text = text; self.tag = tag; self.n = None; self.info = None
        t = text.split(';')[0].strip()
        if t.endswith(':'):
            self.op = 'label'; self.kind = 'label'; self.defs = []; self.uses = []; return
        if t.startswith('.'):
            self.op = 'dir'; self.kind = 'label'; self.defs = []; self.uses = []; return
        parts = t.split(None, 1)
        op = parts[0]; self.op = op
        rest = parts[1] if len(parts) > 1 else ''
        ops = [o.strip() for o in rest.split(',')] if rest else []
        mods = ''
        if ops:
            sp = ops[-1].split()
            ops[-1] = sp[0]; mods = ' '.join(sp[1:])
        R = [parse_reg(o) for o in ops]
        flat = lambda L: [r for x in L for r in x]
        defs, uses = [], []
        if op.startswith('v_mfma'):
            k = 'mfma'; defs = R[0]; uses = flat(R[1:])
        elif op.startswith('ds_read'):
            k = 'dsr'; defs = R[0]; uses = flat(R[1:])
        elif op.startswith('ds_write'):
            k = 'dsw'; uses = flat(R)
        elif op.startswith('ds_bpermute') or op.startswith('ds_swizzle'):
            k = 'dsr'; defs = R[0]; uses = flat(R[1:])
        elif op.startswith('buffer_load') or op.startswith('global_load'):
            if ' lds' in ' ' + mods or op.startswith('global_load_lds'):
                k = 'dma'; uses = flat(R) + [('s', 'm0')]
            else:
                k = 'vld'; defs = R[0]; uses = flat(R[1:])
        elif op.startswith('buffer_store') or op.startswith('global_store'):
            k = 'vst'; uses = flat(R)
        elif op.startswith('global_atomic') or op.startswith('buffer_atomic'):
            k = 'vst'; uses = flat(R)
            if 'sc0' in mods: k = 'vld'; defs = R[0]; uses = flat(R[1:]) if op.startswith('global') else flat(R)
        elif op in ('buffer_inv', 'buffer_wbl2'):
            k = 'vst'
        elif op.startswith('s_load') or op in ('s_memtime', 's_memrealtime'):
            k = 'smem'; defs = R[0]; uses = flat(R[1:])
        elif op == 's_waitcnt': k = 'wait'
        elif op == 's_barrier': k = 'barrier'
        elif op in ('s_nop', 's_sleep', 's_setprio'): k = 'nop'
        elif op == 's_endpgm': k = 'end'
        elif op.startswith('s_cbranch') or op == 's_branch':
            k = 'branch'
            if 'scc' in op: uses = [('s', 'scc')]
            if 'vcc' in op: uses = [('s', 'vcc')]
            if 'exec' in op: uses = [('s', 'exec')]
        elif op.startswith('s_cmp') or op.startswith('s_bitcmp'):
            k = 'salu'; uses = flat(R); defs = [('s', 'scc')]
        elif op.startswith('s_'):
            k = 'salu'; defs = list(R[0]); uses = flat(R[1:])
            if op.startswith('s_cselect') or op.startswith('s_addc') or op.startswith('s_subb'): uses = uses + [('s', 'scc')]
            if 'saveexec' in op: defs = defs + [('s', 'exec')]; uses = uses + [('s', 'exec')]
            if op in ('s_addk_i32', 's_mulk_i32'): uses = uses + defs
            if not (op.startswith('s_mov') or op.startswith('s_cselect') or op.startswith('s_mul') or op.startswith('s_getreg') or op.startswith('s_getpc')):
                defs = defs + [('s', 'scc')]
        elif op.startswith('v_'):
            base = op.replace('_e32', '').replace('_e64', '').replace('_dpp', '').replace('_sdwa', '')
            k = 'trans' if base in TRANS else 'valu'
            defs = list(R[0]); uses = flat(R[1:])
            if base.startswith('v_add_co') or base.startswith('v_addc_co') or base.startswith('v_sub_co'):
                defs = R[0] + R[1]; uses = flat(R[2:])
            if base in ('v_fmac_f32', 'v_dot2c_f32_bf16') or base.startswith('v_permlane'):
                uses = uses + R[0]
            if base.startswith('v_permlane'): defs = R[0] + R[1]
            if op.endswith('_dpp'): uses = uses + R[0]
            if base == 'v_cndmask_b32' and len(ops) == 3: uses = uses + [('s', 'vcc')]
        else:
            raise ValueError('unknown op ' + text)
        self.kind = k; self.defs = defs; self.uses = uses
    def __repr__(self): return self.text

class W:
    kind = 'W'
    def __init__(self, regs=(), tags=(), lgkm0=False, vm0=False):
        self.regs = set()
        for r in regs:
            self.regs.update(parse_reg(r) if isinstance(r, str) else [r])
        self.tags = set(tags); self.vm = None; self.lg = None
        self.lgkm0 = lgkm0; self.vm0 = vm0; self.need = False; self.needv = False; self.needl = False
        self.defs = []; self.uses = []; self.op = 'W'
    @property
    def text(self):
        p = []
        if self.vm is not None and self.needv: p.append(f'vmcnt({self.vm})')
        if self.lg is not None and self.needl: p.append(f'lgkmcnt({self.lg})')
        return 's_waitcnt ' + ' '.join(p) if p else None

def is_vm(i): return i.kind in ('vld', 'vst', 'dma')
def is_lg(i): return i.kind in ('dsr', 'dsw', 'smem')

class Block:
    def __init__(self, name=''):
        self.name = name; self.l = []
    def __call__(self, text, tag=None):
        for t in text.split('\n'):
            t = t.strip()
            if t: self.l.append(I(t, tag))
        return self
    def w(self, *regs, tags=(), lgkm0=False, vm0=False):
        self.l.append(W(regs, tags, lgkm0, vm0)); return self
    def add(self, x):
        if isinstance(x, (list, tuple)):
            for y in x: self.add(y)
        elif isinstance(x, str): self(x)
        elif isinstance(x, Block): self.l.extend(x.l)
        else: self.l.append(x)
        return self

def auto_waits(block):
    out = []; pend = set()
    for x in block.l:
        if x.kind != 'W':
            t = (set(x.uses) | set(x.defs)) & pend
            if t:
                out.append(W(list(t))); pend -= t
            if x.kind in ('vld', 'dsr', 'smem'): pend |= set(x.defs)
        else:
            pend -= x.regs
        out.append(x)
    block.l = out
    return block

def resolve(paths):
    seqs = []
    for p in paths:
        s = []
        for b in p:
            if isinstance(b, tuple):
                blk, lab = b
                idx = [k for k, x in enumerate(blk.l) if x.kind == 'label' and x.text.strip().startswith(lab + ':')]
                assert len(idx) == 1, lab
                s.extend(blk.l[idx[0]:])
            else: s.extend(b.l)
        seqs.append(s)
    for s in seqs:
        vm, lg = [], []
        lastdef = {}
        lasttag = {}
        for x in s:
            if x.kind == 'W':
                nv = nl = None
                for r in x.regs:
                    if r in lastdef:
                        c, i = lastdef[r]
                        if c == 'vm': nv = min(nv, len(vm) - 1 - i) if nv is not None else len(vm) - 1 - i
                        else:
                            n = len(lg) - 1 - i
                            if lg[i].kind == 'smem' or any(y.kind == 'smem' for y in lg[i:]): n = 0
                            nl = min(nl, n) if nl is not None else n
                for t in x.tags:
                    if t in lasttag:
                        c, i = lasttag[t]
                        if c == 'vm': nv = min(nv, len(vm) - 1 - i) if nv is not None else len(vm) - 1 - i
                        else: nl = min(nl, len(lg) - 1 - i) if nl is not None else len(lg) - 1 - i
                if x.lgkm0: nl = 0
                if x.vm0: nv = 0
                if nv is not None:
                    nv = min(nv, 63); x.vm = nv if x.vm is None else min(x.vm, nv)
                if nl is not None:
                    nl = min(nl, 15); x.lg = nl if x.lg is None else min(x.lg, nl)
                continue
            if x.kind == 'wait':
                if 'lgkmcnt(0)' in x.text:
                    lastdef = {r: v for r, v in lastdef.items() if v[0] != 'lg'}; lasttag = {r: v for r, v in lasttag.items() if v[0] != 'lg'}
                if 'vmcnt(0)' in x.text:
                    lastdef = {r: v for r, v in lastdef.items() if v[0] != 'vm'}; lasttag = {r: v for r, v in lasttag.items() if v[0] != 'vm'}
            for r in x.defs: lastdef.pop(r, None)
            if is_vm(x):
                vm.append(x)
                for r in x.defs: lastdef[r] = ('vm', len(vm) - 1)
                if x.tag: lasttag[x.tag] = ('vm', len(vm) - 1)
            elif is_lg(x):
                lg.append(x)
                for r in x.defs: lastdef[r] = ('lg', len(lg) - 1)
                if x.tag: lasttag[x.tag] = ('lg', len(lg) - 1)
    errs = []
    for s in seqs:
        vm, lg = [], []
        m0own = None
        for pos, x in enumerate(s):
            if x.kind == 'W' or x.kind == 'wait':
                if x.kind == 'W': nv, nl = x.vm, x.lg
                else:
                    m = re.search(r'vmcnt\((\d+)\)', x.text); nv = int(m.group(1)) if m else None
                    m = re.search(r'lgkmcnt\((\d+)\)', x.text); nl = int(m.group(1)) if m else None
                if nv is not None and len(vm) > nv:
                    vm = vm[len(vm) - nv:] if nv else []
                    if x.kind == 'W': x.need = True; x.needv = True
                if nl is not None and len(lg) > nl:
                    if any(y.kind == 'smem' for y in lg) and nl: errs.append(f'counted lgkm wait with smem outstanding: {x.text}')
                    lg = lg[len(lg) - nl:] if nl else []
                    if x.kind == 'W': x.need = True; x.needl = True
                continue
            if x.kind == 'salu' and ('s', 'm0') in x.defs: m0own = 'fresh'
            if x.kind == 'dma':
                if m0own == 'fresh': m0own = x.tag
                elif m0own != x.tag: errs.append(f'M0 owned by {m0own} at [{x.text}] tag {x.tag}')
            touched = set(x.uses) | set(x.defs)
            for y in vm + lg:
                if y.defs and touched & set(y.defs) and not (x is y):
                    if (is_vm(x) and is_vm(y) or x.kind == 'dsr' and y.kind == 'dsr') and not (set(x.uses) & set(y.defs)): continue
                    errs.append(f'uncovered: [{x.text}] touches result of [{y.text}]')
            if is_vm(x):
                vm.append(x)
                if len(vm) > 63: errs.append(f'vmcnt overflow at {x.text}')
            elif is_lg(x):
                lg.append(x)
    return seqs, errs

def scc_check(seqs):
    errs = set()
    for s in seqs:
        last = None
        for x in s:
            if x.kind in ('label', 'W'): continue
            if ('s', 'scc') in x.uses:
                ok = last is not None and (last.op.startswith('s_cmp') or last.op.startswith('s_bitcmp') or x.op.startswith('s_addc'))
                if not ok: errs.add(f'SCC for [{x.text}] comes from [{last.text if last else None}]')
            if ('s', 'scc') in x.defs: last = x
    return sorted(errs)

def mfma_passes(op): return 8 if '32x32' in op else 4

def hazards(seqs):
    errs = set()
    for s in seqs:
        L = [x for x in s if x.kind != 'label' and not (x.kind == 'W' and (not x.need or x.text is None))]
        ns = [(int(x.text.split()[1]) + 1) if (x.kind == 'nop' and x.op == 's_nop') else 1 for x in L]
        for iy, y in enumerate(L):
            yv = y.kind in ('valu', 'trans')
            if not (yv or y.kind in ('mfma', 'vst', 'dsw') or (y.kind == 'salu' and ('s', 'm0') in y.defs)): continue
            YD = set(y.defs); YU = set(y.uses)
            t = 4 * ns[iy]; pipe = 4 * mfma_passes(y.op) if y.kind == 'mfma' else 0
            if y.kind == 'mfma':
                p = mfma_passes(y.op); big = 12 if p == 8 else 8
                yc = set(parse_reg(y.text.split(';')[0].split(',')[3].split()[0]))
            vd = {r for r in YD if r[0] in 'va'}; sd = {r for r in YD if r[0] == 's'}
            for ix in range(iy + 1, min(iy + 40, len(L))):
                x = L[ix]
                if x.kind == 'mfma':
                    t = max(t, pipe); pipe = t + 4 * mfma_passes(x.op)
                d = t // 4 - 1
                if d > 20: break
                U = set(x.uses); D = set(x.defs)
                def chk(cond, need, why):
                    if cond and d < need: errs.add(f'{why}: need {need} have {d}: [{y.text}] -> [{x.text}]')
                vec = x.kind in ('valu', 'trans')
                if y.kind == 'mfma':
                    if x.kind == 'mfma':
                        c = set(parse_reg(x.text.split(';')[0].split(',')[3].split()[0]))
                        ab = set(parse_reg(x.text.split(',')[1])) | set(parse_reg(x.text.split(',')[2]))
                        chk(ab & YD, big, 'mfma D->A/B')
                        if c & YD and c != YD: chk(True, big - 2, 'mfma D->C partial')
                        if D & YD and c != YD: chk(True, big - 2, 'mfma WAW D')
                        if D & yc and yc != YD: chk(True, 7 if p == 8 else 3, 'mfma C WAR by mfma')
                    elif x.kind != 'W':
                        chk((U | D) & YD, big, 'mfma D->read/write')
                        if vec or x.kind in ('dsr', 'vld'): chk(D & yc, 7 if p == 8 else 3, 'mfma C WAR')
                if yv:
                    if x.kind == 'mfma': chk(U & vd, 2, 'valu->mfma')
                    if y.kind == 'trans' and x.kind in ('valu', 'mfma', 'vst', 'dsw'): chk(U & vd, 1, 'trans->use')
                    if x.op.startswith('v_permlane'): chk(U & vd, 2, 'valu->permlane')
                    if x.op.endswith('_dpp'): chk(U & vd, 2, 'valu->dpp')
                    if x.op.startswith('v_readfirstlane') or x.op.startswith('v_readlane'): chk(U & vd, 1, 'valu->readlane')
                    if vec: chk(U & sd, 2, 'valu sgpr->valu')
                    if is_vm(x): chk(U & sd, 5, 'valu sgpr->vmem')
                    if x.kind in ('salu', 'branch'): chk(U & sd, 1, 'valu sgpr->salu (pad)')
                    if ('s', 'exec') in YD and x.kind == 'mfma': chk(True, 4, 'valu exec->mfma')
                if y.kind == 'salu' and x.kind == 'dma': chk(True, 1, 'm0->dma')
                if y.kind in ('vst', 'dsw') and vec and ('x4' in y.op or 'x3' in y.op or 'b128' in y.op): chk(D & YU, 2, 'store data WAR')
                t += 4 * ns[ix]
    return sorted(errs)

def render(blocks):
    out = []
    for b in blocks:
        for x in b.l:
            if x.kind == 'W':
                if x.need and x.text: out.append('    ' + x.text)
            elif x.kind == 'label': out.append(x.text)
            else: out.append('    ' + x.text)
    return '\n'.join(out)

COST = {'valu': 1, 'trans': 2, 'dsr': 1, 'dsw': 2, 'vld': 2, 'vst': 2, 'dma': 2, 'salu': 1, 'W': 1, 'wait': 1, 'nop': 1, 'barrier': 3, 'branch': 1, 'smem': 1, 'label': 0}
def order_gap(fill):
    cls = lambda x: 0 if x.kind in ('salu', 'W', 'wait', 'nop', 'barrier', 'branch', 'label', 'smem') else (1 if x.kind in ('dsr', 'dsw', 'vld', 'vst', 'dma') else 2)
    groups = [(g if isinstance(g, list) else [g]) for g in fill]
    key = lambda g: max(cls(y) for y in g) if isinstance(g, list) else cls(g)
    groups.sort(key=key)
    return [y for g in groups for y in g]

def weave(blk, mfmas, fills):
    for g, m in enumerate(mfmas):
        blk.add(m)
        blk.add(order_gap(fills.get(g, [])))
    return blk

def gap_report(mfmas, fills, cap=6):
    over = 0
    for g in range(len(mfmas)):
        f = order_gap(fills.get(g, []))
        c = 0
        for k, y in enumerate(f):
            if y.kind == 'W' and not (y.need): continue
            c += COST.get(y.kind, 1)
        if f and f[0].kind in ('salu', 'W', 'wait', 'nop', 'branch'): c -= 1
        if c > cap: over += c - cap
    return over

def gap_load(fill):
    f = order_gap(fill); c = 0
    for y in f: c += COST.get(y.kind, 1)
    if f and f[0].kind in ('salu', 'W', 'wait', 'nop', 'branch'): c -= 1
    return c

def pack(fl, ops, g, gend, cap=6):
    ops = list(ops)
    while ops and g < gend:
        x = ops[0]; L = x if isinstance(x, list) else [x]
        c = sum(COST.get(y.kind, 1) for y in L)
        mem = any(y.kind in ('vst', 'vld', 'dsr', 'dsw', 'dma') for y in L)
        if mem:
            g += 1
            if g >= gend: break
            fl[g].append(ops.pop(0)); continue
        if gap_load(fl[g]) + c <= cap: fl[g].append(ops.pop(0))
        else: g += 1
    return g, ops

def edf(fl, items, g, sp=2, verbose=False):
    todo = list(items)
    while todo:
        seen = set(); cand = []
        for it in todo:
            c = it.get('c')
            if c is not None and c in seen: continue
            if c is not None: seen.add(c)
            cand.append(it)
        av = [it for it in cand if it['e'] <= g]
        if not av:
            g = min(it['e'] for it in cand); continue
        def dl(it):
            c = it.get('c')
            return min([x['d'] for x in todo if c is not None and x.get('c') == c] + [it['d']])
        it = min(av, key=dl); todo.remove(it)
        for x in it['ops']:
            fl[g].append(x); last = g; g += it.get('sp', sp)
        assert last <= it['d'], ('deadline missed', it.get('c'), last, it['d'])
    return g

SCAL = ('salu', 'W', 'wait', 'nop', 'branch', 'barrier', 'smem')
class Gaps:
    def __init__(self, n):
        self.n = n; self.f = {g: [] for g in range(-1, n + 64)}
    @staticmethod
    def flat(x): return [y for z in x for y in Gaps.flat(z)] if isinstance(x, list) else [x]
    def use(self, g):
        s = v = d = m = 0
        for y in self.flat(self.f[g]):
            if y.kind == 'label': continue
            if y.kind in SCAL: s += 1
            elif is_vm(y): m += 1
            else:
                v += 2 if y.kind in ('trans', 'dsw') else 1
                d += y.kind in ('dsr', 'dsw')
        return s, v, d, m
    def fits(self, g, x):
        s, v, d, m = self.use(g)
        if m: return False
        for y in self.flat(x):
            if y.kind == 'label': continue
            if y.kind in SCAL: s += 1
            elif is_vm(y): return False
            else:
                v += 2 if y.kind in ('trans', 'dsw') else 1
                d += y.kind in ('dsr', 'dsw')
        return v <= 2 and s + v <= 3 and d <= 1
    def add(self, g, x): self.f[g].append(x)
    def put(self, ops, g, gend=None):
        for x in ops:
            if x == 'gap': g += 1; continue
            if isinstance(x, tuple): g += x[1]; continue
            while not self.fits(g, x): g += 1
            self.f[g].append(x)
        assert gend is None or g <= gend, ('put overran', g, gend)
        return g
    def edf(self, items, g=1, step=4, log=None):
        todo = list(items)
        while todo:
            seen = set(); cand = []
            for it in todo:
                c = it.get('c')
                if c is not None and c in seen: continue
                if c is not None: seen.add(c)
                cand.append(it)
            av = [it for it in cand if it['e'] <= g - 1]
            if not av: g += step; continue
            def dl(it):
                c = it.get('c')
                return min([x['d'] for x in todo if c is not None and x.get('c') == c] + [it['d']])
            it = min(av, key=dl); todo.remove(it)
            for (pre, x, post) in it['ops']:
                while self.f[g]: g += step
                if pre: self.f[g - 1].append(list(pre))
                self.f[g].append(x)
                if post: self.f[g + 1].append(list(post))
                last = g; g += step * it.get('sp', 1)
            it['at'] = last
            if log is not None: log.append((it.get('n', it.get('c')), last))
            assert last <= it.get('h', it['d']), ('deadline missed', it.get('n', it.get('c')), last, it['d'])
        return g
    def over(self):
        o = 0
        for g in range(self.n):
            L = [y for y in self.flat(self.f[g]) if not (y.kind == 'W' and not y.need) and y.kind != 'label']
            s = sum(y.kind in SCAL for y in L); m = sum(is_vm(y) for y in L)
            v = sum((2 if y.kind in ('trans', 'dsw') else 1) for y in L if y.kind not in SCAL and not is_vm(y))
            o += max(0, s + v + 3 * m - 3, v - 2)
        return o

def wait_ages(seq, unit):
    t = 0; vm = []; out = []
    for x in seq:
        if x.kind == 'mfma': t += 4 * mfma_passes(x.op)
        elif x.kind == 'W' or x.kind == 'wait':
            if x.kind == 'W': nv = x.vm if x.needv else None
            else:
                m = re.search(r'vmcnt\((\d+)\)', x.text); nv = int(m.group(1)) if m else None
            if nv is not None and len(vm) > nv:
                done = vm[:len(vm) - nv]; vm = vm[len(vm) - nv:]
                ld = [t - a for a, y in done if y.kind != 'vst']; st = [t - a for a, y in done if y.kind == 'vst']
                out.append((t / unit, min(ld) / unit if ld else None, min(st) / unit if st else None))
        elif is_vm(x): vm.append((t, x))
    return out
```

```python
from asm import *

MB = 1 << 20
WS_KV   = 0
WS_XN   = 32 * MB
WS_CTX  = 34 * MB
WS_WOT  = 50 * MB
WS_H    = 54 * MB
WS_ST   = 56 * MB
WS_WGUT = 57 * MB
WS_ACT  = 61 * MB
WS_WDT  = 68 * MB
WS_TS   = 128 * MB

ARG = dict(x=0, c=8, wq=16, wuk=24, wuv=32, wo=40, bx=48, wg=56, wu=64, wd=72, out=80, dbg=88, ws=96)
SIZE = dict(x=2*MB, c=2*MB, wq=4*MB, wuk=4*MB, wuv=4*MB, wo=4*MB, wg=512*3584, wu=512*3584, wd=1792*1024, out=2*MB)

def srd_from_ptr(b, d, p, size):
    b(f's_mov_b32 s{d}, s{p}\ns_and_b32 s{d+1}, s{p+1}, 0xffff\ns_mov_b32 s{d+2}, {size:#x}\ns_mov_b32 s{d+3}, 0x20000')

def srd_ws(b, d, p, off, size):
    b(f's_add_u32 s{d}, s{p}, {off:#x}\ns_addc_u32 s{d+1}, s{p+1}, 0\ns_and_b32 s{d+1}, s{d+1}, 0xffff\ns_mov_b32 s{d+2}, {size:#x}\ns_mov_b32 s{d+3}, 0x20000')

def rng(p, a, n): return f'{p}[{a}:{a+n-1}]'
def mfma(d, a, b, c=None):
    return I(f'v_mfma_f32_32x32x16_bf16 {d}, {a}, {b}, {c if c is not None else d}')

KD = """
.section .rodata,"a"
.p2align 6
.amdhsa_kernel {name}
  .amdhsa_next_free_vgpr {nv}
  .amdhsa_next_free_sgpr 102
  .amdhsa_accum_offset {acc}
  .amdhsa_group_segment_fixed_size 0
  .amdhsa_kernarg_size 104
  .amdhsa_user_sgpr_count 2
  .amdhsa_user_sgpr_kernarg_segment_ptr 1
  .amdhsa_system_sgpr_workgroup_id_x 1
  .amdhsa_float_denorm_mode_32 3
.end_amdhsa_kernel
.text
"""
def wrap(name, body, nv=512, acc=256):
    return f".globl {name}\n.p2align 8\n.type {name},@function\n{name}:\n{body}\n" + KD.format(name=name, nv=nv, acc=acc)

class Stamps:
    def __init__(self, on, kidx):
        self.on = on; self.k = kidx; self.n = 0
    def mark(self, b):
        if not self.on: return
        k = self.n; self.n += 1
        if k >= 16: return
        if k == 0: b('v_mov_b32 v254, 0')
        b(f's_memrealtime s[76:77]\ns_memtime s[78:79]\ns_waitcnt lgkmcnt(0)\nv_writelane_b32 v254, s76, {2*k}\nv_writelane_b32 v254, s78, {2*k+1}')
    def item(self):
        bb = Block(); self.mark(bb); return bb.l
    def flush(self, b, wsptr, name):
        if not self.on: return
        self.n = min(self.n, 15); self.mark(b)
        b(f'v_mbcnt_lo_u32_b32 v1, -1, 0\nv_mbcnt_hi_u32_b32 v1, -1, v1')
        b(f's_lshl_b32 s70, s2, 2\ns_add_u32 s70, s70, s71\ns_lshl_b32 s70, s70, 7\ns_add_u32 s70, s70, {WS_TS + self.k*131072:#x}')
        b(f'v_lshl_add_u32 v4, v1, 2, s70\nv_cmp_gt_u32 vcc, 32, v1\ns_nop 0\ns_and_saveexec_b64 s[72:73], vcc')
        b(f'global_store_dword v4, v254, s[{wsptr}:{wsptr+1}]\ns_mov_b64 exec, s[72:73]')
        if self.on == 3:
            b(f's_cmp_lg_u32 s2, 37\ns_cbranch_scc1 L_nodbg_{name}\ns_cmp_lg_u32 s71, 0\ns_cbranch_scc1 L_nodbg_{name}')
            b('s_load_dwordx2 s[72:73], s[0:1], 88\nv_readlane_b32 s70, v254, 0\ns_nop 2\nv_subrev_u32 v5, s70, v254\nv_lshlrev_b32 v4, 1, v1\nv_add_u32 v4, 8, v4')
            b('v_and_b32 v6, 1, v1\nv_cmp_gt_u32 vcc, 28, v1\nv_cmp_eq_u32 s[76:77], 0, v6\ns_nop 1\ns_and_b64 vcc, vcc, s[76:77]\ns_waitcnt lgkmcnt(0)\ns_and_saveexec_b64 s[76:77], vcc')
            b(f'global_store_dword v4, v5, s[72:73]\ns_mov_b64 exec, s[76:77]\nL_nodbg_{name}:')

def check(name, paths, blocks, verbose=True):
    name = name[-14:]
    seqs, errs = resolve(paths)
    hz = hazards(seqs) + scc_check(seqs)
    for e in errs[:20]: print(f'[{name}] WAIT-ERR', e)
    for e in hz[:20]: print(f'[{name}] HAZARD', e)
    assert not errs and not hz, name
    return render(blocks)
```

```python
import sys, importlib
from common import *
NAME = 'sequential_preLN__compressed_kv_cla__geglu_ffn__prompt'
HEAD = open('cdna_kernels/' + NAME + '.s.ref').read().split('; Override launch')[0]
def build(opt, kernels=None):
    ks = [('k1_kv', 'kvproj_kernel', 163840), ('k2_attn', 'attn_kernel', 163840), ('k3_oproj', 'oproj_kernel', 69632),
          ('k4_gu', 'gateup_kernel', 163840), ('k5_down', 'down_kernel', 69632)]
    if kernels: ks = [k for k in ks if k[0] in kernels]
    hdr = HEAD; body = '.amdgcn_target "amdgcn-amd-amdhsa--gfx950"\n.text\n'
    for mod, name, lds in ks:
        m = importlib.import_module(mod)
        hdr += f'; @launch kernel={name} grid=(256,1,1) block=(256,1,1) lds={getattr(m, "LDS", lds)}\n'
        body += m.gen(name, opt)
    return hdr + body
def build_fused(opt):
    fused = importlib.import_module('fused2' if opt.get('fused') == 2 else 'fused')
    import json
    if 'PAD' in opt: raise SystemExit('edit PAD in fused.py')
    body = fused.gen(NAME + '_kernel', opt)
    return HEAD + '; workspace layout ' + json.dumps({k: (v + opt.get('wsoff', 0) * MB if k[:3] not in ('PAD', 'V2', 'V3') else v) for k, v in fused.LAYOUT.items()}) + '\n; @launch grid=(256,1,1) block=(256,1,1) lds=163840\n.amdgcn_target "amdgcn-amd-amdhsa--gfx950"\n.text\n' + body
if __name__ == '__main__':
    out = sys.argv[1]
    opt = {}
    kernels = None
    for a in sys.argv[2:]:
        k, v = a.split('=')
        if k == 'kernels': kernels = v.split(',')
        else: opt[k] = eval(v)
    open(out, 'w').write(build_fused(opt) if opt.get('fused') else build(opt, kernels))
```

```python
import re

REG_RE = re.compile(r'^(-|abs\()?([vas])(\d+)\)?$')
RNG_RE = re.compile(r'^(-)?([vas])\[(\d+):(\d+)\]$')

def parse_reg(tok):
    tok = tok.strip()
    m = REG_RE.match(tok)
    if m: return [(m.group(2), int(m.group(3)))]
    m = RNG_RE.match(tok)
    if m: return [(m.group(2), i) for i in range(int(m.group(3)), int(m.group(4)) + 1)]
    if tok == 'vcc': return [('s', 'vcc')]
    if tok == 'exec': return [('s', 'exec')]
    if tok == 'm0': return [('s', 'm0')]
    return []

TRANS = ('v_exp_f32', 'v_log_f32', 'v_rcp_f32', 'v_rsq_f32', 'v_sqrt_f32')

class I:
    __slots__ = ('text', 'op', 'kind', 'defs', 'uses', 'tag', 'n', 'info', 'own')
    def __init__(self, text, tag=None):
        self.text = text; self.tag = tag; self.n = None; self.info = None
        t = text.split(';')[0].strip()
        if t.endswith(':'):
            self.op = 'label'; self.kind = 'label'; self.defs = []; self.uses = []; return
        if t.startswith('.'):
            self.op = 'dir'; self.kind = 'label'; self.defs = []; self.uses = []; return
        parts = t.split(None, 1)
        op = parts[0]; self.op = op
        rest = parts[1] if len(parts) > 1 else ''
        ops = [o.strip() for o in rest.split(',')] if rest else []
        mods = ''
        if ops:
            sp = ops[-1].split()
            ops[-1] = sp[0]; mods = ' '.join(sp[1:])
        R = [parse_reg(o) for o in ops]
        flat = lambda L: [r for x in L for r in x]
        defs, uses = [], []
        if op.startswith('v_mfma'):
            k = 'mfma'; defs = R[0]; uses = flat(R[1:])
        elif op.startswith('ds_read'):
            k = 'dsr'; defs = R[0]; uses = flat(R[1:])
        elif op.startswith('ds_write'):
            k = 'dsw'; uses = flat(R)
        elif op.startswith('ds_bpermute') or op.startswith('ds_swizzle'):
            k = 'dsr'; defs = R[0]; uses = flat(R[1:])
        elif op.startswith('buffer_load') or op.startswith('global_load'):
            if ' lds' in ' ' + mods or op.startswith('global_load_lds'):
                k = 'dma'; uses = flat(R) + [('s', 'm0')]
            else:
                k = 'vld'; defs = R[0]; uses = flat(R[1:])
        elif op.startswith('buffer_store') or op.startswith('global_store'):
            k = 'vst'; uses = flat(R)
        elif op.startswith('global_atomic') or op.startswith('buffer_atomic'):
            k = 'vst'; uses = flat(R)
            if 'sc0' in mods: k = 'vld'; defs = R[0]; uses = flat(R[1:]) if op.startswith('global') else flat(R)
        elif op in ('buffer_inv', 'buffer_wbl2'):
            k = 'vst'
        elif op.startswith('s_load') or op.startswith('s_buffer_load') or op in ('s_memtime', 's_memrealtime'):
            k = 'smem'; defs = R[0]; uses = flat(R[1:])
        elif op == 's_waitcnt': k = 'wait'
        elif op == 's_barrier': k = 'barrier'
        elif op in ('s_nop', 's_sleep', 's_setprio'): k = 'nop'
        elif op == 's_endpgm': k = 'end'
        elif op.startswith('s_cbranch') or op == 's_branch':
            k = 'branch'
            if 'scc' in op: uses = [('s', 'scc')]
            if 'vcc' in op: uses = [('s', 'vcc')]
            if 'exec' in op: uses = [('s', 'exec')]
        elif op.startswith('s_cmp') or op.startswith('s_bitcmp'):
            k = 'salu'; uses = flat(R); defs = [('s', 'scc')]
        elif op.startswith('s_'):
            k = 'salu'; defs = list(R[0]); uses = flat(R[1:])
            if op.startswith('s_cselect') or op.startswith('s_addc') or op.startswith('s_subb'): uses = uses + [('s', 'scc')]
            if 'saveexec' in op: defs = defs + [('s', 'exec')]; uses = uses + [('s', 'exec')]
            if op in ('s_addk_i32', 's_mulk_i32'): uses = uses + defs
            if not (op.startswith('s_mov') or op.startswith('s_cselect') or op.startswith('s_mul') or op.startswith('s_getreg') or op.startswith('s_getpc')):
                defs = defs + [('s', 'scc')]
        elif op.startswith('v_'):
            base = op.replace('_e32', '').replace('_e64', '').replace('_dpp', '').replace('_sdwa', '')
            k = 'trans' if base in TRANS else 'valu'
            defs = list(R[0]); uses = flat(R[1:])
            if base.startswith('v_add_co') or base.startswith('v_addc_co') or base.startswith('v_sub_co'):
                defs = R[0] + R[1]; uses = flat(R[2:])
            if base in ('v_fmac_f32', 'v_dot2c_f32_bf16') or base.startswith('v_permlane'):
                uses = uses + R[0]
            if base.startswith('v_permlane'): defs = R[0] + R[1]
            if op.endswith('_dpp'): uses = uses + R[0]
            if base == 'v_cndmask_b32' and len(ops) == 3: uses = uses + [('s', 'vcc')]
        else:
            raise ValueError('unknown op ' + text)
        self.kind = k; self.defs = defs; self.uses = uses
    def __repr__(self): return self.text

class W:
    kind = 'W'
    def __init__(self, regs=(), tags=(), lgkm0=False, vm0=False):
        self.regs = set()
        for r in regs:
            self.regs.update(parse_reg(r) if isinstance(r, str) else [r])
        self.tags = set(tags); self.vm = None; self.lg = None
        self.lgkm0 = lgkm0; self.vm0 = vm0; self.need = False; self.needv = False; self.needl = False
        self.defs = []; self.uses = []; self.op = 'W'
    @property
    def text(self):
        p = []
        if self.vm is not None and self.needv: p.append(f'vmcnt({self.vm})')
        if self.lg is not None and self.needl: p.append(f'lgkmcnt({self.lg})')
        return 's_waitcnt ' + ' '.join(p) if p else None

def is_vm(i): return i.kind in ('vld', 'vst', 'dma')
def is_lg(i): return i.kind in ('dsr', 'dsw', 'smem')

class Block:
    def __init__(self, name=''):
        self.name = name; self.l = []
    def __call__(self, text, tag=None):
        for t in text.split('\n'):
            t = t.strip()
            if t: self.l.append(I(t, tag))
        return self
    def w(self, *regs, tags=(), lgkm0=False, vm0=False):
        self.l.append(W(regs, tags, lgkm0, vm0)); return self
    def add(self, x):
        if isinstance(x, (list, tuple)):
            for y in x: self.add(y)
        elif isinstance(x, str): self(x)
        elif isinstance(x, Block): self.l.extend(x.l)
        else: self.l.append(x)
        return self

def auto_waits(block):
    out = []; pend = set()
    for x in block.l:
        if x.kind != 'W':
            t = (set(x.uses) | set(x.defs)) & pend
            if t:
                out.append(W(list(t))); pend -= t
            if x.kind in ('vld', 'dsr', 'smem'): pend |= set(x.defs)
        else:
            pend -= x.regs
        out.append(x)
    block.l = out
    return block

def resolve(paths):
    seqs = []
    for p in paths:
        s = []
        for b in p:
            if isinstance(b, tuple):
                blk, lab = b
                idx = [k for k, x in enumerate(blk.l) if x.kind == 'label' and x.text.strip().startswith(lab + ':')]
                assert len(idx) == 1, lab
                s.extend(blk.l[idx[0]:])
            else: s.extend(b.l)
        seqs.append(s)
    for s in seqs:
        vm, lg = [], []
        lastdef = {}
        lasttag = {}
        for x in s:
            if x.kind == 'W':
                nv = nl = None
                for r in x.regs:
                    if r in lastdef:
                        c, i = lastdef[r]
                        if c == 'vm': nv = min(nv, len(vm) - 1 - i) if nv is not None else len(vm) - 1 - i
                        else:
                            n = len(lg) - 1 - i
                            if lg[i].kind == 'smem' or any(y.kind == 'smem' for y in lg[i:]): n = 0
                            nl = min(nl, n) if nl is not None else n
                for t in x.tags:
                    if t in lasttag:
                        c, i = lasttag[t]
                        if c == 'vm': nv = min(nv, len(vm) - 1 - i) if nv is not None else len(vm) - 1 - i
                        else: nl = min(nl, len(lg) - 1 - i) if nl is not None else len(lg) - 1 - i
                if x.lgkm0: nl = 0
                if x.vm0: nv = 0
                if nv is not None:
                    nv = min(nv, 63); x.vm = nv if x.vm is None else min(x.vm, nv)
                if nl is not None:
                    nl = min(nl, 15); x.lg = nl if x.lg is None else min(x.lg, nl)
                continue
            if x.kind == 'wait':
                if 'lgkmcnt(0)' in x.text:
                    lastdef = {r: v for r, v in lastdef.items() if v[0] != 'lg'}; lasttag = {r: v for r, v in lasttag.items() if v[0] != 'lg'}
                if 'vmcnt(0)' in x.text:
                    lastdef = {r: v for r, v in lastdef.items() if v[0] != 'vm'}; lasttag = {r: v for r, v in lasttag.items() if v[0] != 'vm'}
            for r in x.defs: lastdef.pop(r, None)
            if is_vm(x):
                vm.append(x)
                for r in x.defs: lastdef[r] = ('vm', len(vm) - 1)
                if x.tag: lasttag[x.tag] = ('vm', len(vm) - 1)
            elif is_lg(x):
                lg.append(x)
                for r in x.defs: lastdef[r] = ('lg', len(lg) - 1)
                if x.tag: lasttag[x.tag] = ('lg', len(lg) - 1)
    errs = []
    for s in seqs:
        vm, lg = [], []
        m0own = None
        for pos, x in enumerate(s):
            if x.kind == 'W' or x.kind == 'wait':
                if x.kind == 'W': nv, nl = x.vm, x.lg
                else:
                    m = re.search(r'vmcnt\((\d+)\)', x.text); nv = int(m.group(1)) if m else None
                    m = re.search(r'lgkmcnt\((\d+)\)', x.text); nl = int(m.group(1)) if m else None
                if nv is not None and len(vm) > nv:
                    vm = vm[len(vm) - nv:] if nv else []
                    if x.kind == 'W': x.need = True; x.needv = True
                if nl is not None and len(lg) > nl:
                    if any(y.kind == 'smem' for y in lg) and nl: errs.append(f'counted lgkm wait with smem outstanding: {x.text}')
                    lg = lg[len(lg) - nl:] if nl else []
                    if x.kind == 'W': x.need = True; x.needl = True
                continue
            if x.kind == 'salu' and ('s', 'm0') in x.defs: m0own = 'fresh'
            if x.kind == 'dma':
                if m0own == 'fresh': m0own = x.tag
                elif m0own != x.tag: errs.append(f'M0 owned by {m0own} at [{x.text}] tag {x.tag}')
            touched = set(x.uses) | set(x.defs)
            for y in vm + lg:
                if y.defs and touched & set(y.defs) and not (x is y):
                    if (is_vm(x) and is_vm(y) or x.kind == 'dsr' and y.kind == 'dsr' or x.op == y.op == 's_buffer_load_dword') and not (set(x.uses) & set(y.defs)): continue
                    errs.append(f'uncovered: [{x.text}] touches result of [{y.text}]')
            if is_vm(x):
                vm.append(x)
                if len(vm) > 63: errs.append(f'vmcnt overflow at {x.text}')
            elif is_lg(x):
                lg.append(x)
    return seqs, errs

def scc_check(seqs):
    errs = set()
    for s in seqs:
        last = None
        for x in s:
            if x.kind in ('label', 'W'): continue
            if ('s', 'scc') in x.uses:
                ok = last is not None and (last.op.startswith('s_cmp') or last.op.startswith('s_bitcmp') or x.op.startswith('s_addc') or x.op.startswith('s_subb'))
                if not ok: errs.add(f'SCC for [{x.text}] comes from [{last.text if last else None}]')
            if ('s', 'scc') in x.defs: last = x
    return sorted(errs)

def mfma_passes(op): return 8 if '32x32' in op else 4

def hazards(seqs):
    errs = set()
    for s in seqs:
        L = [x for x in s if x.kind != 'label' and not (x.kind == 'W' and (not x.need or x.text is None))]
        ns = [(int(x.text.split()[1]) + 1) if (x.kind == 'nop' and x.op == 's_nop') else 1 for x in L]
        for iy, y in enumerate(L):
            yv = y.kind in ('valu', 'trans')
            if not (yv or y.kind in ('mfma', 'vst', 'dsw') or (y.kind == 'salu' and ('s', 'm0') in y.defs)): continue
            YD = set(y.defs); YU = set(y.uses)
            t = 4 * ns[iy]; pipe = 4 * mfma_passes(y.op) if y.kind == 'mfma' else 0
            if y.kind == 'mfma':
                p = mfma_passes(y.op); big = 12 if p == 8 else 8
                yc = set(parse_reg(y.text.split(';')[0].split(',')[3].split()[0]))
            vd = {r for r in YD if r[0] in 'va'}; sd = {r for r in YD if r[0] == 's'}
            for ix in range(iy + 1, min(iy + 40, len(L))):
                x = L[ix]
                if x.kind == 'mfma':
                    t = max(t, pipe); pipe = t + 4 * mfma_passes(x.op)
                d = t // 4 - 1
                if d > 20: break
                U = set(x.uses); D = set(x.defs)
                def chk(cond, need, why):
                    if cond and d < need: errs.add(f'{why}: need {need} have {d}: [{y.text}] -> [{x.text}]')
                vec = x.kind in ('valu', 'trans')
                if y.kind == 'mfma':
                    if x.kind == 'mfma':
                        c = set(parse_reg(x.text.split(';')[0].split(',')[3].split()[0]))
                        ab = set(parse_reg(x.text.split(',')[1])) | set(parse_reg(x.text.split(',')[2]))
                        chk(ab & YD, big, 'mfma D->A/B')
                        if c & YD and c != YD: chk(True, big - 2, 'mfma D->C partial')
                        if D & YD and c != YD: chk(True, big - 2, 'mfma WAW D')
                        if D & yc and yc != YD: chk(True, 7 if p == 8 else 3, 'mfma C WAR by mfma')
                    elif x.kind != 'W':
                        chk((U | D) & YD, big, 'mfma D->read/write')
                        if vec or x.kind in ('dsr', 'vld'): chk(D & yc, 7 if p == 8 else 3, 'mfma C WAR')
                if yv:
                    if x.kind == 'mfma': chk(U & vd, 2, 'valu->mfma')
                    if y.kind == 'trans' and x.kind in ('valu', 'mfma', 'vst', 'dsw'): chk(U & vd, 1, 'trans->use')
                    if x.op.startswith('v_permlane'): chk(U & vd, 2, 'valu->permlane')
                    if x.op.endswith('_dpp'): chk(U & vd, 2, 'valu->dpp')
                    if x.op.startswith('v_readfirstlane') or x.op.startswith('v_readlane'): chk(U & vd, 1, 'valu->readlane')
                    if vec: chk(U & sd, 2, 'valu sgpr->valu')
                    if is_vm(x): chk(U & sd, 5, 'valu sgpr->vmem')
                    if x.kind in ('salu', 'branch'): chk(U & sd, 1, 'valu sgpr->salu (pad)')
                    if ('s', 'exec') in YD and x.kind == 'mfma': chk(True, 4, 'valu exec->mfma')
                if y.kind == 'salu' and x.kind == 'dma': chk(True, 1, 'm0->dma')
                if y.kind in ('vst', 'dsw') and vec and ('x4' in y.op or 'x3' in y.op or 'b128' in y.op): chk(D & YU, 2, 'store data WAR')
                t += 4 * ns[ix]
    return sorted(errs)

def render(blocks):
    out = []
    for b in blocks:
        for x in b.l:
            if x.kind == 'W':
                if x.need and x.text: out.append('    ' + x.text)
            elif x.kind == 'label': out.append(x.text)
            else: out.append('    ' + x.text)
    return '\n'.join(out)

COST = {'valu': 1, 'trans': 2, 'dsr': 1, 'dsw': 2, 'vld': 2, 'vst': 2, 'dma': 2, 'salu': 1, 'W': 1, 'wait': 1, 'nop': 1, 'barrier': 3, 'branch': 1, 'smem': 1, 'label': 0}
def order_gap(fill):
    cls = lambda x: 0 if x.kind in ('salu', 'W', 'wait', 'nop', 'barrier', 'branch', 'label', 'smem') else (1 if x.kind in ('dsr', 'dsw', 'vld', 'vst', 'dma') else 2)
    groups = [(g if isinstance(g, list) else [g]) for g in fill]
    key = lambda g: max(cls(y) for y in g) if isinstance(g, list) else cls(g)
    groups.sort(key=key)
    return [y for g in groups for y in g]

def weave(blk, mfmas, fills):
    for g, m in enumerate(mfmas):
        blk.add(m)
        blk.add(order_gap(fills.get(g, [])))
    return blk

def gap_report(mfmas, fills, cap=6):
    over = 0
    for g in range(len(mfmas)):
        f = order_gap(fills.get(g, []))
        c = 0
        for k, y in enumerate(f):
            if y.kind == 'W' and not (y.need): continue
            c += COST.get(y.kind, 1)
        if f and f[0].kind in ('salu', 'W', 'wait', 'nop', 'branch'): c -= 1
        if c > cap: over += c - cap
    return over

def gap_load(fill):
    f = order_gap(fill); c = 0
    for y in f: c += COST.get(y.kind, 1)
    if f and f[0].kind in ('salu', 'W', 'wait', 'nop', 'branch'): c -= 1
    return c

def pack(fl, ops, g, gend, cap=6):
    ops = list(ops)
    while ops and g < gend:
        x = ops[0]; L = x if isinstance(x, list) else [x]
        c = sum(COST.get(y.kind, 1) for y in L)
        mem = any(y.kind in ('vst', 'vld', 'dsr', 'dsw', 'dma') for y in L)
        if mem:
            g += 1
            if g >= gend: break
            fl[g].append(ops.pop(0)); continue
        if gap_load(fl[g]) + c <= cap: fl[g].append(ops.pop(0))
        else: g += 1
    return g, ops

def edf(fl, items, g, sp=2, verbose=False):
    todo = list(items)
    while todo:
        seen = set(); cand = []
        for it in todo:
            c = it.get('c')
            if c is not None and c in seen: continue
            if c is not None: seen.add(c)
            cand.append(it)
        av = [it for it in cand if it['e'] <= g]
        if not av:
            g = min(it['e'] for it in cand); continue
        def dl(it):
            c = it.get('c')
            return min([x['d'] for x in todo if c is not None and x.get('c') == c] + [it['d']])
        it = min(av, key=dl); todo.remove(it)
        for x in it['ops']:
            fl[g].append(x); last = g; g += it.get('sp', sp)
        assert last <= it['d'], ('deadline missed', it.get('c'), last, it['d'])
    return g

SCAL = ('salu', 'W', 'wait', 'nop', 'branch', 'barrier', 'smem')
class Gaps:
    def __init__(self, n):
        self.n = n; self.f = {g: [] for g in range(-1, n + 64)}
    @staticmethod
    def flat(x): return [y for z in x for y in Gaps.flat(z)] if isinstance(x, list) else [x]
    def use(self, g):
        s = v = d = m = 0
        for y in self.flat(self.f[g]):
            if y.kind == 'label': continue
            if y.kind in SCAL: s += 1
            elif is_vm(y): m += 1
            else:
                v += 2 if y.kind in ('trans', 'dsw') else 1
                d += y.kind in ('dsr', 'dsw')
        return s, v, d, m
    def fits(self, g, x):
        s, v, d, m = self.use(g)
        if m: return False
        for y in self.flat(x):
            if y.kind == 'label': continue
            if y.kind in SCAL: s += 1
            elif is_vm(y): return False
            else:
                v += 2 if y.kind in ('trans', 'dsw') else 1
                d += y.kind in ('dsr', 'dsw')
        return v <= 2 and s + v <= 3 and d <= 1
    def add(self, g, x): self.f[g].append(x)
    def put(self, ops, g, gend=None):
        for x in ops:
            if x == 'gap': g += 1; continue
            if isinstance(x, tuple): g += x[1]; continue
            while not self.fits(g, x): g += 1
            self.f[g].append(x)
        assert gend is None or g <= gend, ('put overran', g, gend)
        return g
    def edf(self, items, g=1, step=4, log=None, cost=(0, 0), slack=8):
        todo = list(items); tf = 0.0
        while todo:
            seen = set(); cand = []
            for it in todo:
                c = it.get('c')
                if c is not None and c in seen: continue
                if c is not None: seen.add(c)
                cand.append(it)
            av = [it for it in cand if it['e'] <= g - 1 - (len(it['ops'][0][0]) > 2)]
            if not av or g < tf - slack: g += step; continue
            def dl(it):
                c = it.get('c')
                return min([x['d'] for x in todo if c is not None and x.get('c') == c] + [it['d']])
            it = min(av, key=dl); todo.remove(it)
            for (pre, x, post) in it['ops']:
                while self.f[g] or g < tf - slack: g += step
                if len(pre) > 2: self.f[g - 2].append(list(pre[:-2])); pre = pre[-2:]
                if pre: self.f[g - 1].append(list(pre))
                self.f[g].append(x)
                if post: self.f[g + 1].append(list(post))
                tf = max(tf, g) + (it['w'] if 'w' in it else cost[x.kind == 'vst'])
                last = g; g += step * it.get('sp', 1)
            it['at'] = last
            if log is not None: log.append((it.get('n', it.get('c')), last))
            assert last <= it.get('h', it['d']), ('deadline missed', it.get('n', it.get('c')), last, it['d'])
        return g
    def over(self):
        o = 0
        for g in range(self.n):
            L = [y for y in self.flat(self.f[g]) if not (y.kind == 'W' and not y.need) and y.kind != 'label']
            s = sum(y.kind in SCAL for y in L); m = sum(is_vm(y) for y in L)
            v = sum((2 if y.kind in ('trans', 'dsw') else 1) for y in L if y.kind not in SCAL and not is_vm(y))
            o += max(0, s + v + 3 * m - 3, v - 2)
        return o

def wait_ages(seq, unit):
    t = 0; vm = []; out = []
    for x in seq:
        if x.kind == 'mfma': t += 4 * mfma_passes(x.op)
        elif x.kind == 'W' or x.kind == 'wait':
            if x.kind == 'W': nv = x.vm if x.needv else None
            else:
                m = re.search(r'vmcnt\((\d+)\)', x.text); nv = int(m.group(1)) if m else None
            if nv is not None and len(vm) > nv:
                done = vm[:len(vm) - nv]; vm = vm[len(vm) - nv:]
                ld = [t - a for a, y in done if y.kind != 'vst']; st = [t - a for a, y in done if y.kind == 'vst']
                out.append((t / unit, min(ld) / unit if ld else None, min(st) / unit if st else None))
        elif is_vm(x): vm.append((t, x))
    return out
```
